```python
import torch

def _softmax(x, axis=-1):
    return torch.softmax(x, dim=axis)
def _gelu(x):
    return torch.nn.functional.gelu(x, approximate="tanh")
def _silu(x):
    return torch.nn.functional.silu(x)
def _sigmoid(x):
    return torch.sigmoid(x)
def _layernorm(x, axis=-1, eps=1e-5):
    m = x.mean(dim=axis, keepdim=True)
    v = x.var(dim=axis, keepdim=True, unbiased=False)
    return (x - m) / torch.sqrt(v + eps)
def _scatter_add(tgt, idx, src, axis=0):
    return tgt.clone().index_add_(axis, idx, src)
def _segment_sum(src, seg, n):
    out = torch.zeros((n,) + src.shape[1:], dtype=src.dtype)
    return out.index_add_(0, seg, src)
def _pad(x, pw):
    flat = tuple(v for pair in reversed(pw) for v in pair)
    return torch.nn.functional.pad(x, flat)

kernel_name = 'sequential_preLN__spectral_gfnet__glu_gated_geglu__prompt'

def setup_inputs():

    _w = (lambda a: (lambda t: t.to(torch.bfloat16) if t.is_floating_point() else t)(torch.as_tensor(a)))
    def _A_setup():
        B, S, D = 1, 2048, 512
        Df = D // 2 + 1
        return {
            "x": _w((lambda *s: torch.randn(*s, dtype=torch.bfloat16) * 0.05)(B, S, D)),
            "w_r": _w((lambda *s: torch.randn(*s, dtype=torch.bfloat16) * 0.4)(S, Df) * 0.02),
            "w_i": _w((lambda *s: torch.randn(*s, dtype=torch.bfloat16) * 0.4)(S, Df) * 0.02),
        }
    _A_in = _A_setup()

    def _B_setup():
        B, S, Dm, Df = 1, 2048, 512, 1792
        return {
            "x": _w((lambda *s: torch.randn(*s, dtype=torch.bfloat16) * 0.05)(B, S, Dm)),
            "w_gate": _w((lambda *s: torch.randn(*s, dtype=torch.bfloat16) * 0.4)(Dm, Df) * (Dm ** -0.5)),
            "w_up": _w((lambda *s: torch.randn(*s, dtype=torch.bfloat16) * 0.4)(Dm, Df) * (Dm ** -0.5)),
            "w_down": _w((lambda *s: torch.randn(*s, dtype=torch.bfloat16) * 0.4)(Df, Dm) * (Df ** -0.5)),
        }
    _B_in = _B_setup()

    return {
        "A_x": _A_in["x"],
        "A_w_r": _A_in["w_r"],
        "A_w_i": _A_in["w_i"],
        "B_x": _B_in["x"],
        "B_w_gate": _B_in["w_gate"],
        "B_w_up": _B_in["w_up"],
        "B_w_down": _B_in["w_down"],
    }

def reference(A_x, A_w_r, A_w_i, B_x, B_w_gate, B_w_up, B_w_down):
    def _A_ref(x, w_r, w_i):
        B, S, D = x.shape
        X = (lambda x, axes=(-2,-1): torch.fft.rfft2(x.float(), dim=axes))(x, axes=(-2, -1))
        W = w_r + 1j * w_i
        X = X * W
        y = (lambda x, s, axes=(-2,-1): torch.fft.irfft2(x, s=s, dim=axes).to(torch.bfloat16))(X, (S, D), axes=(-2, -1))
        return y

    def _B_ref(x, w_gate, w_up, w_down):
        g = torch.einsum("bsd,df->bsf", x, w_gate)
        u = torch.einsum("bsd,df->bsf", x, w_up)
        h = _gelu(g) * u
        return torch.einsum("bsf,fd->bsd", h, w_down)

    x = A_x
    h = x + _A_ref(_layernorm(x, axis=-1), A_w_r, A_w_i)
    h2 = h + _B_ref(_layernorm(h, axis=-1), B_w_gate, B_w_up, B_w_down)
    return h2
```

```python
import re
REG = re.compile(r'(?<![\w.])([vas])(?:\[(\d+):(\d+)\]|(\d+))(?![\w])')
TRANS = ('v_exp_', 'v_log_', 'v_rcp_', 'v_rsq_', 'v_sqrt_', 'v_sin_', 'v_cos_')
def regs_of(tok):
    out = []
    for m in REG.finditer(tok):
        k = m.group(1)
        if m.group(2) is not None: out += [(k, i) for i in range(int(m.group(2)), int(m.group(3)) + 1)]
        else: out.append((k, int(m.group(4))))
    if re.search(r'\bvcc\b', tok): out.append(('s', 'vcc'))
    if re.search(r'\bexec(_lo|_hi)?\b', tok): out.append(('s', 'exec'))
    if re.search(r'\bm0\b', tok): out.append(('s', 'm0'))
    return out
def split_ops(s):
    ops, depth, cur = [], 0, ''
    for ch in s:
        if ch in '[(': depth += 1
        if ch in '])': depth -= 1
        if ch == ',' and depth == 0: ops.append(cur.strip()); cur = ''
        else: cur += ch
    if cur.strip(): ops.append(cur.strip())
    return ops
class Ins:
    def __init__(self, text):
        self.text = text
        p = text.split(None, 1)
        self.op = op = p[0]
        ops = split_ops(p[1]) if len(p) > 1 else []
        self.w, self.r = set(), set()
        self.mfma = op.startswith('v_mfma')
        self.valu = op.startswith('v_') and not self.mfma
        self.trans = op.startswith(TRANS)
        self.ds = op.startswith('ds_')
        self.vmem = op.startswith(('buffer_', 'global_'))
        self.smem = op.startswith(('s_load', 's_memtime', 's_memrealtime'))
        self.salu = op.startswith('s_') and not self.smem
        self.dpp = '_dpp' in op or 'quad_perm' in text or 'row_' in text
        self.perm = op.startswith('v_permlane')
        self.rdlane = op.startswith(('v_readfirstlane', 'v_readlane'))
        self.ldsdma = self.vmem and re.search(r'\blds\b', text) is not None
        self.states = 1
        R = [regs_of(o) for o in ops]
        allr = lambda i: set(x for l in R[i:] for x in l)
        self.load = False; self.store = False; self.C = set(); self.AB = set()
        if self.mfma:
            self.w = set(R[0]); self.AB = set(R[1]) | set(R[2]); self.C = set(R[3]); self.r = self.AB | self.C
            self.passes = 8 if '32x32' in op else 4
        elif self.valu:
            self.w = set(R[0]); self.r = allr(1)
            if op.startswith(('v_swap', 'v_permlane')): self.w |= set(R[1]); self.r |= set(R[0])
            if op.startswith(('v_fmac', 'v_dot2c', 'v_pk_fmac')) or self.dpp or op.startswith('v_writelane'): self.r |= set(R[0])
            if op.startswith(('v_add_co', 'v_addc_co', 'v_sub_co')): self.w |= set(R[1])
        elif self.ds:
            if op.startswith(('ds_read', 'ds_bpermute', 'ds_permute', 'ds_swizzle')) or '_rtn' in op:
                self.w = set(R[0]); self.r = allr(1); self.load = True
            else: self.r = allr(0); self.store = True
        elif self.vmem:
            if self.ldsdma: self.r = allr(0) | {('s', 'm0')}
            elif '_load_' in op:
                self.w = set(R[0]); self.r = allr(1); self.load = True
                if 'd16' in op: self.r |= set(R[0])
            else:
                self.r = allr(0); self.store = True
                self.sdata = set(R[1]) if op.startswith('global_') else set(R[0])
            self.wide = self.store and ('x4' in op or 'x3' in op)
        elif self.smem:
            self.w = set(R[0]); self.r = allr(1); self.load = True
        else:
            if op == 's_nop': self.states = int(ops[0], 0) + 1
            elif op.startswith(('s_cmp', 's_bitcmp', 's_waitcnt', 's_branch', 's_cbranch', 's_barrier', 's_endpgm', 's_setprio', 's_sleep')): self.r = allr(0)
            else:
                self.w = set(R[0]); self.r = allr(1)
                if 'saveexec' in op: self.w.add(('s', 'exec'))
def need_states(p, c):
    n = 0
    vw = {x for x in p.w if x[0] != 's'}; sw = {x for x in p.w if x[0] == 's'}
    if p.valu:
        if c.mfma and vw & c.r: n = max(n, 2)
        if c.valu and (c.dpp or c.perm) and vw & c.r: n = max(n, 2)
        if c.rdlane and vw & c.r: n = max(n, 1)
        if p.trans and vw & c.r and not c.mfma: n = max(n, 1)
        if sw & c.r:
            if c.valu: n = max(n, 4 if c.op.startswith(('v_readlane', 'v_writelane')) else 2)
            if c.vmem: n = max(n, 5)
            if c.salu or c.smem: n = max(n, 1)
    if p.mfma:
        big = {4: 8, 8: 12}[p.passes]; part = {4: 6, 8: 10}[p.passes]
        if c.mfma:
            if p.w & c.AB: n = max(n, big)
            if p.w & c.C and not (p.w == c.C and p.passes == c.passes): n = max(n, part)
            if p.w & c.w and not (p.w == c.C): n = max(n, part)
        elif p.w & (c.r | c.w): n = max(n, big)
        if (c.valu or c.load) and p.C & c.w: n = max(n, {4: 3, 8: 7}[p.passes])
    if p.salu and ('s', 'm0') in p.w and c.ldsdma: n = max(n, 1)
    if p.vmem and p.store and p.wide and p.sdata & c.w: n = max(n, 2)
    return n
class Asm:
    def __init__(self):
        self.L = []; self.hist = []; self.vm = []; self.lg = []; self.ntok = 0; self.count = {}
    def raw(self, s): self.L.append(s)
    def label(self, s): self.L.append(s + ':')
    def comment(self, s): self.L.append('; ' + s)
    def _emit(self, ins):
        self.L.append('  ' + ins.text); self.hist.append(ins); self.hist = self.hist[-24:]
        self.count[ins.op] = self.count.get(ins.op, 0) + 1
    def _wait(self, vm=None, lg=None):
        parts = []
        if vm is not None and vm < len(self.vm):
            vm = min(vm, 63); parts.append(f'vmcnt({vm})'); self.vm = self.vm[len(self.vm) - vm:] if vm else []
        if lg is not None and lg < len(self.lg):
            if any(e[2] for e in self.lg): lg = 0
            lg = min(lg, 15); parts.append(f'lgkmcnt({lg})'); self.lg = self.lg[len(self.lg) - lg:] if lg else []
        if parts: self._emit(Ins('s_waitcnt ' + ' '.join(parts)))
    def _calc(self, regs):
        vm = lg = None
        for i, e in enumerate(self.vm):
            if e[1] & regs: vm = len(self.vm) - 1 - i
        for i, e in enumerate(self.lg):
            if e[1] & regs: lg = len(self.lg) - 1 - i
        return vm, lg
    def need(self, text):
        self._wait(*self._calc(set(regs_of(text))))
    def wait_tok(self, *toks):
        vm = lg = None
        for t in toks:
            for i, e in enumerate(self.vm):
                if e[0] == t: vm = min(vm, len(self.vm) - 1 - i) if vm is not None else len(self.vm) - 1 - i
            for i, e in enumerate(self.lg):
                if e[0] == t: lg = min(lg, len(self.lg) - 1 - i) if lg is not None else len(self.lg) - 1 - i
        self._wait(vm, lg)
    def wait_vm0(self, force=False):
        if force and not self.vm: self._emit(Ins('s_waitcnt vmcnt(0)'))
        self._wait(vm=0)
    def wait_lg0(self): self._wait(lg=0)
    def I(self, text, track=True):
        tok = None
        for t in text.split('\n'):
            t = t.strip()
            if t: tok = self._one(t, track)
        return tok
    def _one(self, text, track):
        c = Ins(text)
        self._wait(*self._calc(c.r | c.w))
        d = 0; need = 0
        for p in reversed(self.hist):
            need = max(need, need_states(p, c) - d)
            d += p.states
            if d >= 20: break
        while need > 0:
            k = min(need, 16); self._emit(Ins(f's_nop {k-1}')); need -= k
        self._emit(c)
        if not track: return None
        self.ntok += 1
        if c.vmem: self.vm.append((self.ntok, set(c.w) if c.load else set(), False))
        elif c.ds: self.lg.append((self.ntok, set(c.w) if c.load else set(), False))
        elif c.smem: self.lg.append((self.ntok, set(c.w), True))
        return self.ntok
    def ntok_last_vm(self): return self.vm[-1][0]
    def text(self): return '\n'.join(self.L) + '\n'
def vr(b, n=1, k='v'): return f'{k}{b}' if n == 1 else f'{k}[{b}:{b+n-1}]'
def ar(b, n=1): return vr(b, n, 'a')
def sr(b, n=1): return vr(b, n, 's')
import struct
def fhex(x): return '0x%08x' % struct.unpack('<I', struct.pack('<f', x))[0]
```

```python
import sys, math
from asmlib import *
NAME = "sequential_preLN__spectral_gfnet__glu_gated_geglu__prompt"
BETA = struct.unpack('<f', struct.pack('<f', (0.044715 * 2 * math.sqrt(2/math.pi) * math.log2(math.e)) ** (1/3)))[0]
KAPPA = 2 * math.sqrt(2/math.pi) * math.log2(math.e) / BETA
X1, X2, HN, HR, HH = 0, 0x200000, 0x400000, 0x600000, 0x800000
FL0, FL3, FL4, GEN, STAMP = 0x1000000, 0x1010000, 0x1020000, 0x1030000, 0x1040000
WS_SIZE = 0x1100000
IMG_G, IMG_U, STG = 0, 57344, 114688
SCR_A, SCR_X, SCR_BI, SCR_BO, SCR_C = STG, STG + 8192, STG + 16384, STG + 16384 + 8448, STG
SPIN = 0x20000
S_WR, S_WI, S_W1, S_WD, S_WS, S_OUT = 24, 28, 32, 36, 40, 44
sW, sG, sM, sPOS, sTAG, sMODE, sSPIN, sXCC = 48, 49, 50, 51, 52, 54, 55, 56
sT = 57
sA = 64
STS = list(range(70, 102, 2)) + [10, 20, 4, 6, 8]

class Alloc:
    def __init__(self, lo, hi): self.free = list(range(lo, hi))
    def get(self, n=1, al=None):
        al = al or (2 if n > 1 else 1)
        fs = set(self.free)
        for b in self.free:
            if b % al == 0 and all((b + i) in fs for i in range(n)):
                for i in range(n): self.free.remove(b + i)
                return b
        raise Exception(f"out of vgprs ({n})")
    def put(self, b, n=1):
        for i in range(n):
            assert b + i not in self.free
            self.free.append(b + i)
        self.free.sort()

def gen(cfg):
    a = Asm(); I = a.I
    dbg = cfg.get('stamps', False)
    nst = [0]
    def stamp(name):
        if dbg:
            I(f"s_memrealtime s[{STS[nst[0]]}:{STS[nst[0]]+1}]"); nst[0] += 1
            cfg.setdefault('stamp_names', []).append(name)
    V = Alloc(30, 256)
    vL, vN, vQ = 1, 2, 3
    t0, t1, t2, t3, FLG, FV, vFL, vL16, vG1, vS2, vD2, vR, vC = 4, 5, 6, 7, 8, 12, 16, 17, 18, 22, 26, 28, 29
    lab = [0]
    def srd(s, base, size):
        I(f"s_mov_b32 s{s}, s{base}\ns_mov_b32 s{s+1}, s{base+1}\ns_mov_b32 s{s+2}, {size}\ns_mov_b32 s{s+3}, 0x20000")
    def modal(lines):
        for t in lines: a.need(t)
        lab[0] += 1; n = lab[0]
        I(f"s_cmp_eq_u32 s{sMODE}, 0\ns_cbranch_scc1 L_slow{n}")
        tok = None
        for t in lines: tok = I(t)
        a.label(f"L_back{n}")
        cfg.setdefault('_tail', []).append((n, lines))
        return tok
    def spin_check():
        I(f"s_add_u32 s{sSPIN}, s{sSPIN}, 1\ns_cmp_ge_u32 s{sSPIN}, {SPIN}\ns_cbranch_scc1 L_end")

    a.raw(f"; @launch grid=(256,1,1) block=(256,1,1) lds=163840")
    a.raw('.amdgcn_target "amdgcn-amd-amdhsa--gfx950"\n.text')
    a.raw(f".globl {NAME}_kernel\n.p2align 8\n.type {NAME}_kernel,@function\n{NAME}_kernel:")
    I("s_cmp_ge_u32 s2, 256\ns_cbranch_scc0 L_go\ns_endpgm")
    a.label("L_go")
    I("s_load_dwordx16 s[4:19], s[0:1], 0\ns_load_dwordx4 s[20:23], s[0:1], 64")
    stamp("start")
    I(f"s_and_b32 s{sG}, s2, 7\ns_lshr_b32 s{sM}, s2, 3\ns_lshl_b32 s{sPOS}, s{sG}, 5\ns_add_u32 s{sPOS}, s{sPOS}, s{sM}")
    XR = V.get(8, 4)
    I(f"v_lshrrev_b32 v{t0}, 5, v0\nv_and_b32 v{t1}, 31, v0\nv_lshlrev_b32 v{t0}, 18, v{t0}\nv_lshlrev_b32 v{t1}, 4, v{t1}\ns_lshl_b32 s{sT}, s{sPOS}, 10")
    I(f"v_add3_u32 v{t0}, v{t0}, v{t1}, s{sT}")
    I(f"v_and_b32 v{vL}, 63, v0\nv_lshrrev_b32 v{t2}, 6, v0\nv_and_b32 v{vN}, 15, v0\nv_bfe_u32 v{vQ}, v0, 4, 2\nv_readfirstlane_b32 s{sW}, v{t2}")
    I(f"global_load_dwordx4 {vr(XR,4)}, v{t0}, s[4:5]\nglobal_load_dwordx4 {vr(XR+4,4)}, v{t0}, s[4:5] offset:512")
    I(f"s_add_u32 s{sT+1}, s22, {GEN}\ns_addc_u32 s{sT+2}, s23, 0" .replace(f"s{sT+1}", "s58").replace(f"s{sT+2}", "s59"))
    I(f"s_load_dwordx2 s[{sTAG}:{sTAG+1}], s[58:59], 0")
    srd(S_WS, 22, WS_SIZE)
    I(f"s_mov_b32 s{sSPIN}, 0\ns_getreg_b32 s{sXCC}, hwreg(HW_REG_XCC_ID)\ns_and_b32 s{sXCC}, s{sXCC}, 15")
    vX1S, vX2S = V.get(), V.get()
    ONES = V.get(4, 4)
    for i in range(4): I(f"v_mov_b32 v{ONES+i}, -1")
    I(f"v_lshlrev_b32 v{t1}, 11, v{vQ}\nv_lshl_add_u32 v{t1}, v{vN}, 4, v{t1}\nv_lshl_add_u32 v{vX1S}, v{t2}, 8, v{t1}")
    I(f"v_bfe_u32 v{t1}, v0, 3, 4\nv_lshlrev_b32 v{t1}, 9, v{t1}\nv_lshrrev_b32 v{t3}, 7, v0\nv_lshl_add_u32 v{t1}, v{t3}, 7, v{t1}\nv_and_b32 v{t3}, 7, v0\nv_lshl_add_u32 v{vX2S}, v{t3}, 4, v{t1}")
    I(f"s_lshl_b32 s{sA}, s{sPOS}, 13\ns_add_u32 s{sA+1}, s{sA}, {X2}")
    I(f"buffer_store_dwordx4 {vr(ONES,4)}, v{vX1S}, {sr(S_WS,4)}, s{sA} offen sc1")
    I(f"buffer_store_dwordx4 {vr(ONES,4)}, v{vX1S}, {sr(S_WS,4)}, s{sA} offen offset:1024 sc1")
    I(f"buffer_store_dwordx4 {vr(ONES,4)}, v{vX2S}, {sr(S_WS,4)}, s{sA+1} offen sc1")
    tok_clr = I(f"buffer_store_dwordx4 {vr(ONES,4)}, v{vX2S}, {sr(S_WS,4)}, s{sA+1} offen offset:256 sc1")
    PF = V.get(2)
    I(f"s_getpc_b64 s[60:61]\nv_lshlrev_b32 v{t1}, 7, v0")
    I(f"global_load_dword v{PF}, v{t1}, s[60:61]")
    srd(S_WR, 6, 2048*514); srd(S_WI, 8, 2048*514)
    WRAW = V.get(8); WSP = V.get(8)
    vWG = V.get()
    def w_gather():
        I(f"v_mul_u32_u24 v{t1}, {8*514}, v{vN}\nv_mul_u32_u24 v{t3}, {512*514}, v{vQ}\nv_add_u32 v{vWG}, v{t1}, v{t3}")
        I(f"s_lshr_b32 s{sT}, s{sM}, 3\ns_lshl_b32 s{sT}, s{sT}, 2\ns_and_b32 s58, s{sM}, 7\ns_lshl_b32 s58, s58, 6\ns_add_u32 s{sT}, s{sT}, s58\ns_lshl_b32 s58, s{sW}, 4\ns_add_u32 s{sA+2}, s{sT}, s58")
        I(f"s_mul_i32 s58, s{sG}, 514\ns_add_u32 s{sT}, s{sA+2}, s58")
        for i in range(4):
            I(f"buffer_load_dword v{WRAW+i}, v{vWG}, {sr(S_WR,4)}, s{sT} offen\nbuffer_load_dword v{WRAW+4+i}, v{vWG}, {sr(S_WI,4)}, s{sT} offen")
            if i < 3: I(f"s_add_u32 s{sT}, s{sT}, {128*514}")
        I(f"s_cmp_lg_u32 s{sA+2}, 0\ns_cbranch_scc1 L_nosp")
        for i in range(4):
            I(f"buffer_load_ushort v{WSP+i}, v{vWG}, {sr(S_WR,4)}, s58 offen offset:512", track=False)
            I(f"buffer_load_ushort v{WSP+4+i}, v{vWG}, {sr(S_WI,4)}, s58 offen offset:512", track=False)
            I(f"s_add_u32 s58, s58, {128*514}")
        a.label("L_nosp")
    w_gather()
    vW1 = V.get(7, 1)
    I(f"s_lshr_b32 s{sT}, s{sW}, 1\ns_cmp_eq_u32 s{sT}, 0\ns_cselect_b32 s{S_W1}, s12, s14\ns_cselect_b32 s{S_W1+1}, s13, s15\ns_mov_b32 s{S_W1+2}, {512*3584}\ns_mov_b32 s{S_W1+3}, 0x20000")
    for nn in range(7):
        I(f"v_add_u32 v{t0}, {64*nn}, v{vL}\nv_mul_u32_u24 v{t1}, 9363, v{t0}\nv_lshrrev_b32 v{t1}, 16, v{t1}")
        I(f"v_mul_u32_u24 v{t3}, 7, v{t1}\nv_sub_u32 v{t0}, v{t0}, v{t3}\nv_xor_b32 v{t1}, s{sT}, v{t1}")
        I(f"v_and_b32 v{t3}, 1, v{t1}\nv_lshlrev_b32 v{t3}, 2, v{t3}\nv_and_or_b32 v{t3}, v{t1}, 56, v{t3}\nv_bfe_u32 v{t1}, v{t1}, 1, 2\nv_add_u32 v{t1}, v{t1}, v{t3}")
        I(f"v_mul_u32_u24 v{t1}, 3584, v{t1}\nv_lshl_add_u32 v{vW1+nn}, v{t0}, 4, v{t1}")
    I(f"s_and_b32 s58, s{sW}, 1\ns_mul_i32 s59, s58, {64*3584}\ns_mul_i32 s{sA+3}, s{sM}, 112\ns_add_u32 s{sA+3}, s{sA+3}, s59")
    I(f"s_mul_i32 s58, s58, 7168\ns_mul_i32 s59, s{sT}, {IMG_U}\ns_add_u32 s{sA+4}, s58, s59")
    w1tok = []
    def w1_round():
        r = len(w1tok)
        for nn in range(7):
            I(f"s_add_u32 m0, s{sA+4}, {r*2*7168 + nn*1024}")
            tk = I(f"buffer_load_dwordx4 v{vW1+nn}, {sr(S_W1,4)}, s{sA+3} offen lds")
        I(f"s_add_u32 s{sA+3}, s{sA+3}, {2*64*3584}")
        w1tok.append(tk)
    W1AT = cfg.get('w1_at', ['start', 'xarr', 'x1ok', 'x2ok'])
    def w1_point(name):
        for p in W1AT:
            if p == name: w1_round()
    w1_point('start')
    EA = V.get(16, 4)
    GA = V.get(64, 4)
    fq, fn = V.get(), V.get()
    I(f"v_cvt_f32_u32 v{fq}, v{vQ}\nv_cvt_f32_u32 v{fn}, v{vN}")
    vSGN_ODD = V.get()
    I(f"v_and_b32 v{t0}, 1, v{vN}\nv_mul_u32_u24 v{t0}, 0x8000, v{t0}\nv_lshl_or_b32 v{vSGN_ODD}, v{t0}, 16, v{t0}")
    T = V.get(16, 4)
    I(f"v_lshrrev_b32 v{t0}, 1, v{vN}\nv_mul_u32_u24 v{t1}, v{t0}, v{vQ}\nv_and_b32 v{t3}, 1, v{vN}\nv_lshl_add_u32 v{t1}, v{t3}, 1, v{t1}\nv_cvt_f32_u32 v{t1}, v{t1}\nv_mul_f32 v{t1}, 0.125, v{t1}".replace("0.125", fhex(0.125)))
    I(f"v_and_b32 v{t0}, 1, v{t0}\nv_mul_u32_u24 v{t0}, 0x8000, v{t0}\nv_lshl_or_b32 v{t0}, v{t0}, 16, v{t0}")
    I(f"v_cvt_f32_u32 v{t3}, v{t2}\nv_mul_f32 v{t3}, {fhex(0.25)}, v{t3}")
    for cb in range(2):
        if cb: I(f"v_add_f32 v{t3}, {fhex(0.125)}, v{t3}")
        I(f"v_add_f32 v{T+1}, v{t1}, v{t3}\nv_add_f32 v{T+2}, v{T+1}, v{t3}\nv_add_f32 v{T+3}, v{T+2}, v{t3}")
        I(f"v_cos_f32 v{T}, v{t1}\nv_cos_f32 v{T+1}, v{T+1}\nv_cos_f32 v{T+2}, v{T+2}\nv_cos_f32 v{T+3}, v{T+3}")
        e = EA + 8*cb
        I(f"v_cvt_pk_f16_f32 v{e}, v{T}, v{T+1}\nv_cvt_pk_f16_f32 v{e+1}, v{T+2}, v{T+3}")
        if cb: I(f"v_xor_b32 v{e+2}, 0x80008000, v{e}\nv_xor_b32 v{e+3}, 0x80008000, v{e+1}")
        else: I(f"v_mov_b32 v{e+2}, v{e}\nv_mov_b32 v{e+3}, v{e+1}")
        for i in range(4): I(f"v_xor_b32 v{e+4+i}, v{t0}, v{e+i}")
    def recur(nch, kf, a0, nsteps, scale, dst, cvt, fix=None):
        TW = V.get(2*nch, 2); P = V.get(4*nch, 2)
        for ch in range(nch):
            p = P + 4*ch
            I(f"v_add_f32 v{p+3}, v{a0[ch]}, v{kf[ch]}\nv_cos_f32 v{TW+2*ch}, v{kf[ch]}\nv_cos_f32 v{p}, v{a0[ch]}\nv_sin_f32 v{p+1}, v{a0[ch]}\nv_cos_f32 v{p+2}, v{p+3}\nv_sin_f32 v{p+3}, v{p+3}")
        I(f"s_mov_b32 s58, {fhex(scale)}")
        for ch in range(nch):
            p = P + 4*ch
            I(f"v_add_f32 v{TW+2*ch}, v{TW+2*ch}, v{TW+2*ch}")
            I(f"v_pk_mul_f32 {vr(p,2)}, {vr(p,2)}, s[58:59] op_sel_hi:[1,0]\nv_pk_mul_f32 {vr(p+2,2)}, {vr(p+2,2)}, s[58:59] op_sel_hi:[1,0]")
        for jp in range(nsteps//2):
            for ch in range(nch):
                p = P + 4*ch; rc, rs = dst(ch, jp)
                if fix and jp == 0 and fix(ch) is not None:
                    I(f"v_mul_f32 v{rc}, v{p}, v{fix(ch)}\n{cvt} v{rc}, v{rc}, v{p+2}")
                else: I(f"{cvt} v{rc}, v{p}, v{p+2}")
                I(f"{cvt} v{rs}, v{p+1}, v{p+3}")
            if jp + 1 < nsteps//2:
                for o in (0, 2):
                    for ch in range(nch):
                        p = P + 4*ch
                        I(f"v_pk_fma_f32 {vr(p+o,2)}, {vr(p+2-o,2)}, {vr(TW+2*ch,2)}, {vr(p+o,2)} op_sel_hi:[1,0,1] neg_lo:[0,0,1] neg_hi:[0,0,1]")
        V.put(TW, 2*nch); V.put(P, 4*nch)
    I(f"v_lshlrev_b32 v{t0}, 4, v{vN}\nv_lshl_add_u32 v{t0}, v{t2}, 1, v{t0}\nv_mul_f32 v{t3}, {fhex(16.0)}, v{fq}")
    for u in range(4):
        if u == 0:
            I(f"v_mov_b32 v{T}, 0x100\nv_cmp_eq_u32 vcc, 0, v{t0}\nv_cndmask_b32 v{T}, v{t0}, v{T}, vcc")
        else: I(f"v_add_u32 v{T+u}, {(u&1) + 8*(u>>1)}, v{t0}")
        I(f"v_cvt_f32_u32 v{T+u}, v{T+u}\nv_mul_f32 v{T+u}, {fhex(1/512)}, v{T+u}\nv_mul_f32 v{T+4+u}, v{T+u}, v{t3}")
    recur(4, [T+u for u in range(4)], [T+4+u for u in range(4)], 16, 0.125,
          lambda u, jp: (GA + 16*u + 8*(jp//4) + jp % 4, GA + 16*u + 8*(jp//4) + 4 + jp % 4), "v_cvt_pk_f16_f32")
    vAW = V.get(2, 1); vAR = V.get(4, 1)
    I(f"v_lshrrev_b32 v{t0}, 5, v0\nv_and_b32 v{t1}, 31, v0\nv_lshlrev_b32 v{t1}, 4, v{t1}\nv_lshl_add_u32 v{t1}, v{t0}, 10, v{t1}")
    vXW = V.get()
    I(f"v_add_u32 v{vXW}, {SCR_X}, v{t1}")
    I(f"v_and_b32 v{t0}, 1, v{t0}\nv_lshlrev_b32 v{t0}, 3, v{t0}\nv_and_or_b32 v{t0}, v0, 16, v{t0}\nv_xor_b32 v{t1}, v{t0}, v{t1}\nv_add_u32 v{vAW}, {SCR_A}, v{t1}\nv_xor_b32 v{vAW+1}, 8, v{vAW}")
    I(f"v_lshrrev_b32 v{vR}, 2, v{vN}\nv_and_b32 v{vC}, 3, v{vN}")
    I(f"v_lshlrev_b32 v{t0}, 10, v{vQ}\nv_lshl_add_u32 v{t0}, v{vR}, 7, v{t0}\nv_lshl_add_u32 v{t0}, v{vC}, 5, v{t0}")
    I(f"v_and_b32 v{t1}, 1, v{vQ}\nv_and_or_b32 v{t1}, v{vR}, 2, v{t1}\nv_lshl_add_u32 v{t0}, v{t1}, 3, v{t0}\nv_add_u32 v{vAR}, {SCR_A}, v{t0}")
    for tp in range(1, 4): I(f"v_xor_b32 v{vAR+tp}, {8*tp}, v{vAR}")
    I(f"s_add_u32 s{sTAG}, s{sTAG}, 0x7f4a7c15\ns_addc_u32 s{sTAG+1}, s{sTAG+1}, 0x9e3779b9")
    I(f"v_mov_b32 v{FLG}, s{sTAG}\nv_mov_b32 v{FLG+1}, s{sTAG+1}\nv_mov_b32 v{FLG+2}, s{sXCC}\nv_mov_b32 v{FLG+3}, 0")
    I(f"s_lshl_b32 s{sT}, s{sPOS}, 7\ns_lshl_b32 s58, s{sW}, 4\ns_add_u32 s{sT}, s{sT}, s58\ns_add_u32 s{sA+5}, s{sT}, {FL0}")
    stamp("tabA")
    XF = V.get(16, 4)
    def unpack(dst, src, n):
        for i in range(n):
            I(f"v_lshlrev_b32 v{dst+2*i}, 16, v{src+i}\nv_and_b32 v{dst+2*i+1}, 0xffff0000, v{src+i}")
    a.need(vr(XR, 8))
    stamp("xarr")
    w1_point('xarr')
    unpack(XF, XR, 8)
    def stats(X, wide, extra_scale):
        S, Q2 = T, T + 4
        I(f"v_pk_add_f32 {vr(S,2)}, {vr(X,2)}, {vr(X+2,2)}\nv_pk_add_f32 {vr(S+2,2)}, {vr(X+4,2)}, {vr(X+6,2)}")
        I(f"v_pk_mul_f32 {vr(Q2,2)}, {vr(X,2)}, {vr(X,2)}\nv_pk_mul_f32 {vr(Q2+2,2)}, {vr(X+2,2)}, {vr(X+2,2)}")
        for i in range(4, 16, 2):
            o = (i//2 % 2)*2
            if i >= 8: I(f"v_pk_add_f32 {vr(S+o,2)}, {vr(S+o,2)}, {vr(X+i,2)}")
            I(f"v_pk_fma_f32 {vr(Q2+o,2)}, {vr(X+i,2)}, {vr(X+i,2)}, {vr(Q2+o,2)}")
        I(f"v_pk_add_f32 {vr(S,2)}, {vr(S,2)}, {vr(S+2,2)}\nv_pk_add_f32 {vr(Q2,2)}, {vr(Q2,2)}, {vr(Q2+2,2)}")
        I(f"v_add_f32 v{S}, v{S}, v{S+1}\nv_add_f32 v{Q2}, v{Q2}, v{Q2+1}")
        dp = "row_mask:0xf bank_mask:0xf"
        if not wide:
            I(f"v_permlane16_swap_b32 v{S}, v{Q2}\nv_add_f32 v{S}, v{S}, v{Q2}")
            for d in ("quad_perm:[1,0,3,2]", "quad_perm:[2,3,0,1]", "row_half_mirror", "row_mirror"):
                I(f"v_add_f32_dpp v{S}, v{S}, v{S} {d} {dp}")
            I(f"v_mov_b32 v{Q2}, v{S}\nv_permlane16_swap_b32 v{S}, v{Q2}")
        else:
            I(f"v_permlane32_swap_b32 v{S}, v{Q2}\nv_add_f32 v{S}, v{S}, v{Q2}")
            for d in ("quad_perm:[2,3,0,1]", "row_ror:4", "row_ror:8"):
                I(f"v_add_f32_dpp v{S}, v{S}, v{S} {d} {dp}")
            I(f"v_mov_b32 v{Q2}, v{S}\nv_permlane16_swap_b32 v{S}, v{Q2}\nv_add_f32 v{S}, v{S}, v{Q2}")
            I(f"v_mov_b32 v{Q2}, v{S}\nv_permlane32_swap_b32 v{S}, v{Q2}")
        I(f"v_mul_f32 v{S}, {fhex(1/512)}, v{S}\nv_mul_f32 v{Q2}, {fhex(1/512)}, v{Q2}\nv_fma_f32 v{Q2}, -v{S}, v{S}, v{Q2}")
        I(f"v_max_f32 v{Q2}, 0, v{Q2}\nv_add_f32 v{Q2}, {fhex(1e-5)}, v{Q2}\nv_rsq_f32 v{Q2}, v{Q2}\nv_mul_f32 v{Q2}, {fhex(extra_scale)}, v{Q2}\nv_mul_f32 v{S}, v{S}, v{Q2}")
        return Q2, S
    R_, B_ = stats(XF, False, 0.125)
    a.wait_tok(tok_clr)
    I(f"s_mov_b64 exec, 1\nbuffer_store_dwordx4 {vr(FLG,4)}, off, {sr(S_WS,4)}, s{sA+5} sc1\ns_mov_b64 exec, -1")
    XN = V.get(8, 4)
    for i in range(8):
        I(f"v_pk_fma_f32 {vr(XF+2*i,2)}, {vr(XF+2*i,2)}, {vr(R_,2)}, {vr(B_,2)} op_sel_hi:[1,0,0] neg_lo:[0,0,1] neg_hi:[0,0,1]")
    for i in (0, 1, 4, 5, 2, 3, 6, 7):
        I(f"v_cvt_pk_f16_f32 v{XN+i}, v{XF+2*i}, v{XF+2*i+1}")
        if i == 5: I(f"ds_write2_b64 v{vAW}, {vr(XN,2)}, {vr(XN+4,2)} offset0:0 offset1:64")
    I(f"ds_write2_b64 v{vAW+1}, {vr(XN+2,2)}, {vr(XN+6,2)} offset0:0 offset1:64")
    a.wait_lg0(); I("s_barrier")
    V.put(XN, 8); V.put(XF, 16); V.put(ONES, 4)
    AF = V.get(32, 4)
    for tp in range(4):
        for ks in range(2):
            for hh in range(2):
                I(f"ds_read_b64_tr_b16 {vr(AF+8*tp+4*ks+2*hh,2)}, v{vAR+tp} offset:{ks*4096+hh*512}")
    D1 = V.get(32, 4)
    for tp in range(4):
        for ks in range(2):
            for cb in range(2):
                d = D1 + 16*cb + 4*tp
                I(f"v_mfma_f32_16x16x32_f16 {vr(d,4)}, {vr(AF+8*tp+4*ks,4)}, {vr(EA+8*cb+4*ks,4)}, {vr(d,4) if ks else 0}")
    Y1, Y2 = AF, AF + 16
    D2 = T
    for ks2 in range(2):
        for cb in range(2):
            for e in range(4):
                d = D1 + 16*cb + 8*ks2 + 2*e
                I(f"v_cvt_pk_f16_f32 v{Y1+8*cb+4*ks2+e}, v{d}, v{d+1}")
        for u in range(4):
            I(f"v_mfma_f32_16x16x32_f16 {vr(D2+4*u,4)}, {vr(Y1+8*(u&1)+4*ks2,4)}, {vr(GA+16*u+8*ks2,4)}, {vr(D2+4*u,4) if ks2 else 0}")
            for e in range(2):
                x = 8*((u>>1)) + 4*ks2 + 2*(u&1) + e
                I(f"v_xor_b32_dpp v{Y2+x}, v{Y1+x}, v{vSGN_ODD} quad_perm:[1,0,3,2] row_mask:0xf bank_mask:0xf")
        for u in range(4):
            I(f"v_mfma_f32_16x16x32_f16 {vr(D2+4*u,4)}, {vr(Y2+8*(u&1)+4*ks2,4)}, {vr(GA+16*u+8*ks2+4,4)}, {vr(D2+4*u,4)}")
    O = D1
    for u in range(4):
        for b in range(2):
            I(f"v_cvt_pk_f16_f32 v{O+4*b+u}, v{D2+4*u+2*b}, v{D2+4*u+2*b+1}")
        for b in range(2):
            I(f"v_min_u32 v{O+4*b+u}, -2, v{O+4*b+u}")
    I(f"buffer_store_dwordx4 {vr(O,4)}, v{vX1S}, {sr(S_WS,4)}, s{sA} offen sc1")
    I(f"buffer_store_dwordx4 {vr(O+4,4)}, v{vX1S}, {sr(S_WS,4)}, s{sA} offen offset:1024 sc1")
    stamp("Adone")
    V.put(EA, 16); V.put(GA, 64); V.put(AF, 32); V.put(vAW, 2); V.put(vAR, 4); V.put(vX1S)
    vX1L = V.get()
    I(f"v_lshrrev_b32 v{t0}, 7, v0\nv_bfe_u32 v{t1}, v0, 1, 2\nv_lshlrev_b32 v{t1}, 4, v{t1}\nv_lshl_add_u32 v{t0}, v{t0}, 6, v{t1}\nv_bfe_u32 v{t1}, v0, 3, 4\nv_add_u32 v{t0}, v{t0}, v{t1}")
    I(f"v_lshlrev_b32 v{vFL}, 7, v{t0}\nv_and_b32 v{t1}, 1, v0\nv_lshlrev_b32 v{t1}, 4, v{t1}\nv_lshl_add_u32 v{vX1L}, v{t0}, 13, v{t1}")
    I(f"s_lshr_b32 s{sT}, s{sM}, 3\ns_lshl_b32 s{sT}, s{sT}, 4\ns_add_u32 s{sA+5}, s{sT}, {FL0}\ns_add_u32 s62, s{sA+5}, {128*128}")
    flag_loads = [f"buffer_load_dwordx2 {vr(FV,2)}, v{vFL}, {sr(S_WS,4)}, s{sA+5} offen sc1", f"buffer_load_dwordx2 {vr(FV+2,2)}, v{vFL}, {sr(S_WS,4)}, s62 offen sc1"]
    for t in flag_loads: I(t)
    V.put(D1, 32)
    HX = V.get(16, 4)
    I(f"ds_write_b128 v{vXW}, {vr(XR,4)}\nds_write_b128 v{vXW}, {vr(XR+4,4)} offset:512")
    I(f"v_and_b32 v{t0}, 1, v{vN}\nv_lshl_add_u32 v{t0}, v{t2}, 1, v{t0}\nv_lshlrev_b32 v{t0}, 10, v{t0}\nv_lshrrev_b32 v{t1}, 1, v{vN}\nv_lshl_add_u32 v{t0}, v{t1}, 7, v{t0}\nv_lshl_add_u32 v{t0}, v{vQ}, 4, v{t0}\nv_add_u32 v{t0}, {SCR_X}, v{t0}")
    I(f"ds_read_b128 {vr(XR,4)}, v{t0}\nds_read_b128 {vr(XR+4,4)}, v{t0} offset:64")
    V.put(vXW)
    MB = V.get(32, 4)
    TW1, TW2 = V.get(8, 2), V.get(8, 2)
    WF = V.get(16, 2)
    fp1 = V.get()
    I(f"v_cvt_f32_u32 v{fp1}, s{sG}")
    for i in range(4): I(f"v_fma_f32 v{T+i}, v{fq}, 4.0, {['0','1.0','2.0','2.0'][i]}")
    I(f"v_add_f32 v{T+3}, 1.0, v{T+3}\nv_mul_f32 v{t0}, {fhex(8.0)}, v{fn}\nv_add_f32 v{t0}, v{t0}, v{fp1}")
    def cs(ang, scale=None):
        for i in range(4): I(f"v_cos_f32 v{T+8+i}, v{ang+i}\nv_sin_f32 v{T+12+i}, v{ang+i}")
        if scale:
            for i in range(8): I(f"v_mul_f32 v{T+8+i}, {fhex(scale)}, v{T+8+i}")
    def frag(st, cvt, fwd):
        for i in range(4):
            c, s = f"v{T+8+i}", f"v{T+12+i}"
            if fwd: I(f"{cvt} v{MB+8*st+i}, {c}, {s}\n{cvt} v{MB+8*st+4+i}, -{s}, {c}")
            else: I(f"{cvt} v{MB+8*st+i}, {c}, -{s}\n{cvt} v{MB+8*st+4+i}, {s}, {c}")
    I(f"v_mul_f32 v{t1}, {fhex(1/128)}, v{t0}")
    for i in range(4): I(f"v_mul_f32 v{T+4+i}, v{T+i}, v{t1}")
    cs(T+4, 0.25); frag(0, "v_cvt_pk_f16_f32", True)
    for i in range(4):
        I(f"v_mul_f32 v{T+4+i}, {fhex(-1/16)}, v{T+4+i}")
    for i in range(4): I(f"v_cos_f32 v{TW1+i}, v{T+4+i}\nv_sin_f32 v{TW1+4+i}, v{T+4+i}")
    I(f"v_mul_f32 v{t1}, {fhex(1/16)}, v{fn}")
    for i in range(4): I(f"v_mul_f32 v{T+4+i}, v{T+i}, v{t1}")
    cs(T+4); frag(1, "v_cvt_pk_f16_f32", True); frag(2, "v_cvt_pk_bf16_f32", False)
    I(f"v_mul_f32 v{t1}, {fhex(1/128)}, v{fn}\ns_mov_b32 s58, {fhex(8.0)}")
    for i in range(4): I(f"v_fma_f32 v{T+4+i}, v{T+i}, s58, v{fp1}\nv_mul_f32 v{T+4+i}, v{T+4+i}, v{t1}")
    cs(T+4); frag(3, "v_cvt_pk_bf16_f32", False)
    for i in range(4): I(f"v_mul_f32 v{T+4+i}, {fhex(1/16)}, v{T+4+i}")
    for i in range(4): I(f"v_cos_f32 v{TW2+i}, v{T+4+i}\nv_sin_f32 v{TW2+4+i}, v{T+4+i}")
    V.put(fp1)
    unpack(HX, XR, 8); V.put(XR, 8)
    vBW, vBR, vOW, vOR = V.get(), V.get(), V.get(), V.get()
    I(f"v_and_b32 v{t0}, 1, v0\nv_mul_u32_u24 v{t0}, 4160, v{t0}\nv_lshrrev_b32 v{t1}, 1, v0\nv_lshl_add_u32 v{t0}, v{t1}, 2, v{t0}\nv_add_u32 v{vBW}, {SCR_BI}, v{t0}\nv_add_u32 v{vOR}, {SCR_BO}, v{t0}")
    I(f"v_lshlrev_b32 v{t0}, 4, v{vL}\nv_lshl_add_u32 v{t1}, v{t2}, 11, v{t0}\nv_lshrrev_b32 v{t3}, 1, v{t2}\nv_lshl_add_u32 v{t1}, v{t3}, 6, v{t1}\nv_add_u32 v{vBR}, {SCR_BI}, v{t1}")
    I(f"v_lshl_add_u32 v{t0}, v{t2}, 10, v{t0}\nv_add_u32 v{vOW}, {SCR_BO}, v{t0}")
    I(f"s_lshl_b32 s{sT}, s{sG}, 10\ns_lshl_b32 s58, s{sM}, 5\ns_add_u32 s{sA}, s{sT}, s58\ns_add_u32 s63, s{sA}, 0x100000")
    stamp("tabB")
    a.wait_vm0()
    stamp("ack1")
    a.label("L_f0")
    I(f"v_cmp_ne_u64 vcc, s[{sTAG}:{sTAG+1}], {vr(FV,2)}\nv_cmp_ne_u64 s[58:59], s[{sTAG}:{sTAG+1}], {vr(FV+2,2)}\ns_or_b64 vcc, vcc, s[58:59]\ns_cbranch_vccz L_f0ok")
    spin_check()
    for t in flag_loads: I(t)
    a.wait_vm0(); I("s_branch L_f0")
    a.label("L_f0ok")
    IN = V.get(8, 4)
    def poll(name, loads, fill=None):
        for t in loads: I(t)
        if fill: fill()
        a.label(f"L_{name}")
        a.wait_vm0(True)
        I(f"v_max3_u32 v{t0}, v{IN}, v{IN+1}, v{IN+2}\nv_max3_u32 v{t1}, v{IN+3}, v{IN+4}, v{IN+5}\nv_max3_u32 v{t0}, v{t0}, v{IN+6}, v{IN+7}\nv_max_u32 v{t0}, v{t0}, v{t1}")
        I(f"v_cmp_eq_u32 vcc, -1, v{t0}\ns_cbranch_vccz L_{name}ok")
        spin_check()
        for t in loads: I(t, track=False)
        I(f"s_branch L_{name}")
        a.label(f"L_{name}ok")
    EC = V.get(16, 4); GC = V.get(64, 4)
    def fill1():
        for ri in range(2):
            for i in range(4):
                I(f"v_lshlrev_b32 v{WF+4*ri+i}, 16, v{WRAW+4*ri+i}\nv_and_b32 v{WF+8+4*ri+i}, 0xffff0000, v{WRAW+4*ri+i}")
        I(f"s_cmp_lg_u32 s{sA+2}, 0\ns_cbranch_scc1 L_nosp2")
        for i in range(8): I(f"v_lshlrev_b32 v{WF+i}, 16, v{WSP+i}")
        a.label("L_nosp2")
        I(f"v_and_b32 v{t0}, 1, v{vN}\nv_lshl_add_u32 v{t0}, v{t2}, 1, v{t0}\nv_cvt_f32_u32 v{t0}, v{t0}\nv_mul_f32 v{t0}, {fhex(0.125)}, v{t0}")
        I(f"v_lshrrev_b32 v{t1}, 1, v{vN}\nv_and_b32 v{t3}, 1, v{t1}\nv_mul_u32_u24 v{t3}, 0x8000, v{t3}\nv_lshl_or_b32 v{t3}, v{t3}, 16, v{t3}\nv_cvt_f32_u32 v{t1}, v{t1}\nv_mul_f32 v{t1}, {fhex(0.125)}, v{t1}")
        I(f"v_mul_f32 v{T}, v{fq}, v{t0}\nv_add_f32 v{T}, v{T}, v{T}\nv_add_f32 v{T+1}, v{T}, v{t0}")
        for c in range(4):
            if c: I(f"v_add_f32 v{T}, v{T}, v{t1}\nv_add_f32 v{T+1}, v{T+1}, v{t1}")
            I(f"v_cos_f32 v{T+2}, v{T}\nv_sin_f32 v{T+3}, v{T}\nv_cos_f32 v{T+4}, v{T+1}\nv_sin_f32 v{T+5}, v{T+1}")
            I(f"v_cvt_pk_bf16_f32 v{EC+2*c}, v{T+2}, -v{T+3}\nv_cvt_pk_bf16_f32 v{EC+2*c+1}, v{T+4}, -v{T+5}")
        for i in range(8): I(f"v_xor_b32 v{EC+8+i}, v{t3}, v{EC+i}")
    poll("x1", [f"buffer_load_dwordx4 {vr(IN,4)}, v{vX1L}, {sr(S_WS,4)}, s{sA} offen sc1", f"buffer_load_dwordx4 {vr(IN+4,4)}, v{vX1L}, {sr(S_WS,4)}, s63 offen sc1"], fill1)
    stamp("x1ok")
    V.put(WRAW, 8); V.put(WSP, 8); V.put(vWG); V.put(vX1L); V.put(PF, 2)
    for h2 in range(2):
        for e in range(2):
            I(f"ds_write2st64_b32 v{vBW}, v{IN+4*h2+2*e}, v{IN+4*h2+2*e+1} offset0:{2*h2+8*e} offset1:{2*h2+8*e+4}")
    a.wait_lg0(); I("s_barrier")
    I(f"ds_read_b128 {vr(IN,4)}, v{vBR}\nds_read_b128 {vr(IN+4,4)}, v{vBR} offset:1024")
    I(f"v_and_b32 v{vFL}, 31, v{vL}\nv_lshlrev_b32 v{vFL}, 7, v{vFL}\ns_lshl_b32 s{sT}, s{sG}, 12\ns_add_u32 s{sT}, s{sT}, s{sA+5}")
    I(f"buffer_load_dword v{FV}, v{vFL}, {sr(S_WS,4)}, s{sT} offen offset:8 sc1")
    w1_point('x1ok')
    DB = V.get(16, 4)
    def bstage(st, op, data_is_a):
        for col in range(2):
            for ri in range(2):
                x, m = vr(IN+4*col, 4), vr(MB+8*st+4*ri, 4)
                I(f"{op} {vr(DB+8*col+4*ri,4)}, {x if data_is_a else m}, {m if data_is_a else x}, 0")
    def cmul(tw, cvt):
        for col in range(2):
            c, s = tw(col); R, J = DB + 8*col, DB + 8*col + 4; o = T + 8*col
            for e in (0, 2): I(f"v_pk_mul_f32 {vr(o+e,2)}, {vr(R+e,2)}, {vr(c+e,2)}\nv_pk_mul_f32 {vr(o+4+e,2)}, {vr(R+e,2)}, {vr(s+e,2)}")
            for e in (0, 2): I(f"v_pk_fma_f32 {vr(o+e,2)}, {vr(J+e,2)}, {vr(s+e,2)}, {vr(o+e,2)} neg_lo:[1,0,0] neg_hi:[1,0,0]\nv_pk_fma_f32 {vr(o+4+e,2)}, {vr(J+e,2)}, {vr(c+e,2)}, {vr(o+4+e,2)}")
        for col in range(2):
            o = T + 8*col
            for i in range(4): I(f"{cvt} v{IN+4*col+i}, v{o+i}, v{o+4+i}")
    bstage(0, "v_mfma_f32_16x16x32_f16", True); cmul(lambda c: (TW1, TW1+4), "v_cvt_pk_f16_f32")
    bstage(1, "v_mfma_f32_16x16x32_f16", False); cmul(lambda c: (WF+8*c, WF+8*c+4), "v_cvt_pk_bf16_f32")
    bstage(2, "v_mfma_f32_16x16x32_bf16", True); cmul(lambda c: (TW2, TW2+4), "v_cvt_pk_bf16_f32")
    bstage(3, "v_mfma_f32_16x16x32_bf16", True)
    for ri in range(2):
        for i in range(4): I(f"v_cvt_pk_bf16_f32 v{T+4*ri+i}, v{DB+4*ri+i}, v{DB+8+4*ri+i}")
        for i in range(4): I(f"v_min_u32 v{T+4*ri+i}, -2, v{T+4*ri+i}")
        I(f"ds_write_b128 v{vOW}, {vr(T+4*ri,4)} offset:{4160*ri}")
    a.wait_lg0(); I("s_barrier")
    for h2 in range(2):
        for e in range(2):
            I(f"ds_read2st64_b32 {vr(DB+4*h2+2*e,2)}, v{vOR} offset0:{2*h2+8*e} offset1:{2*h2+8*e+4}")
    for h2 in range(2):
        I(f"buffer_store_dwordx4 {vr(DB+4*h2,4)}, v{vX2S}, {sr(S_WS,4)}, s{sA+1} offen offset:{256*h2} sc1")
    stamp("Bdone")
    V.put(MB, 32); V.put(TW1, 8); V.put(TW2, 8); V.put(WF, 16); V.put(vBW); V.put(vBR); V.put(vOW); V.put(vOR); V.put(vX2S)
    I(f"s_or_b32 s{sT}, s2, s{sW}\ns_cmp_lg_u32 s{sT}, 0\ns_cbranch_scc1 L_nogen")
    I(f"s_mov_b32 s{sT}, {GEN}\ns_mov_b64 exec, 1")
    I(f"buffer_store_dwordx2 {vr(FLG,2)}, off, {sr(S_WS,4)}, s{sT} sc1", track=False)
    I("s_mov_b64 exec, -1")
    a.label("L_nogen")
    KF, A0 = V.get(4, 1), V.get(8, 1); FIX = V.get()
    I(f"v_lshl_add_u32 v{t0}, v{vR}, 3, v{vC}\nv_cvt_f32_u32 v{t0}, v{t0}")
    I(f"v_lshlrev_b32 v{t1}, 6, v{vQ}\nv_lshl_add_u32 v{t1}, v{t2}, 1, v{t1}\nv_cmp_eq_u32 vcc, 0, v{t1}\nv_cvt_f32_u32 v{t1}, v{t1}")
    I(f"v_mov_b32 v{FIX}, 0.5\nv_and_b32 v{t3}, 0x80000000, v{vSGN_ODD}\nv_xor_b32 v{FIX}, v{t3}, v{FIX}\nv_cndmask_b32 v{FIX}, 1.0, v{FIX}, vcc")
    for t in range(4):
        I(f"v_add_f32 v{t3}, {fhex(32.0*(t>>1)+4.0*(t&1))}, v{t0}\nv_mul_f32 v{t3}, {fhex(1/512)}, v{t3}\nv_mul_f32 v{KF+t}, {fhex(8.0)}, v{t3}")
        I(f"v_mul_f32 v{A0+2*t}, v{t3}, v{t1}\nv_add_f32 v{A0+2*t+1}, v{A0+2*t}, v{t3}")
    def ctab(half):
        chs = [(t, cb) for t in (2*half, 2*half+1) for cb in range(2)]
        recur(4, [KF+t for t, cb in chs], [A0+2*t+cb for t, cb in chs], 8, 2.0**-11,
              lambda ch, jp: (GC + 16*chs[ch][0] + 8*chs[ch][1] + jp, GC + 16*chs[ch][0] + 8*chs[ch][1] + 4 + jp), "v_cvt_pk_bf16_f32",
              fix=lambda ch: FIX if chs[ch][1] == 0 else None)
    ctab(0)
    vX2L, vCW, vCR, vHS = V.get(), V.get(), V.get(), V.get()
    I(f"v_lshrrev_b32 v{t0}, 1, v{vN}\nv_lshlrev_b32 v{t0}, 4, v{t0}\nv_lshl_add_u32 v{t0}, v{t2}, 2, v{t0}\nv_add_u32 v{t0}, v{t0}, v{vQ}\nv_and_b32 v{t1}, 1, v{vN}\nv_lshlrev_b32 v{t1}, 4, v{t1}\nv_lshl_add_u32 v{vX2L}, v{t0}, 14, v{t1}")
    I(f"s_lshl_b32 s{sT}, s{sPOS}, 5\ns_add_u32 s{sA}, s{sT}, {X2}\ns_add_u32 s63, s{sA}, 8192")
    a.wait_vm0()
    stamp("ack2")
    def fill2():
        I(f"v_cmp_ne_u32 vcc, s{sXCC}, v{FV}\ns_cmp_eq_u64 vcc, 0\ns_cselect_b32 s{sMODE}, {0 if cfg.get('force_slow') else 1}, 0")
        ctab(1)
        I(f"v_lshlrev_b32 v{t0}, 4, v{vL}\nv_add_u32 v{vCR}, {SCR_C}, v{t0}\nv_lshl_add_u32 v{vCW}, v{t2}, 12, v{vCR}")
        I(f"v_lshrrev_b32 v{t0}, 1, v{vN}\nv_lshlrev_b32 v{t0}, 11, v{t0}\nv_lshl_add_u32 v{t0}, v{vQ}, 8, v{t0}\nv_lshl_add_u32 v{t0}, v{t2}, 5, v{t0}\nv_and_b32 v{t1}, 1, v{vN}\nv_lshl_add_u32 v{vHS}, v{t1}, 4, v{t0}")
        I(f"v_xor_b32 v{vSGN_ODD}, 0x80008000, v{vSGN_ODD}")
        I(f"s_mov_b32 s60, 0x05040100\ns_mov_b32 s61, 0x07060302")
    poll("x2", [f"buffer_load_dwordx4 {vr(IN,4)}, v{vX2L}, {sr(S_WS,4)}, s{sA} offen sc1", f"buffer_load_dwordx4 {vr(IN+4,4)}, v{vX2L}, {sr(S_WS,4)}, s63 offen sc1"], fill2)
    stamp("x2ok")
    V.put(KF, 4); V.put(A0, 8); V.put(FIX); V.put(vX2L); V.put(fq); V.put(fn)
    FA = DB
    for cb in range(2):
        for e in range(4): I(f"v_perm_b32 v{FA+4*cb+e}, v{IN+2*e+1}, v{IN+2*e}, s{60+cb}")
    D1 = V.get(32, 4)
    k = 0
    for t in range(4):
        for cb in range(2):
            I(f"v_mfma_f32_16x16x32_bf16 {vr(D1+8*t+4*cb,4)}, {vr(FA+4*cb,4)}, {vr(GC+16*t+8*cb,4)}, 0")
            I(f"v_xor_b32_dpp v{FA+8+k}, v{FA+k}, v{vSGN_ODD} quad_perm:[1,0,3,2] row_mask:0xf bank_mask:0xf"); k += 1
    pend = []
    for t in range(4):
        for cb in range(2):
            I(f"v_mfma_f32_16x16x32_bf16 {vr(D1+8*t+4*cb,4)}, {vr(FA+8+4*cb,4)}, {vr(GC+16*t+8*cb+4,4)}, {vr(D1+8*t+4*cb,4)}")
    for t in range(4):
        for e in range(4): I(f"v_cvt_pk_bf16_f32 v{T+4*t+e}, v{D1+8*t+2*e}, v{D1+8*t+2*e+1}")
        I(f"ds_write_b128 v{vCW}, {vr(T+4*t,4)} offset:{1024*t}")
    a.wait_lg0(); I("s_barrier")
    ZF = GC
    for ks in range(4):
        for t in range(4): I(f"ds_read_b128 {vr(ZF+16*ks+4*t,4)}, v{vCR} offset:{4096*ks+1024*t}")
    w1_point('x2ok')
    for ks in range(4):
        for t in range(4):
            I(f"v_mfma_f32_16x16x32_bf16 {vr(HX+4*t,4)}, {vr(ZF+16*ks+4*t,4)}, {vr(EC+4*ks,4)}, {vr(HX+4*t,4)}")
    I(f"s_lshl_b32 s{sT}, s{sG}, 18\ns_lshr_b32 s58, s{sM}, 1\ns_lshl_b32 s58, s58, 14\ns_add_u32 s{sT}, s{sT}, s58\ns_and_b32 s58, s{sM}, 1\ns_lshl_b32 s58, s58, 7\ns_add_u32 s{sT}, s{sT}, s58")
    I(f"s_add_u32 s{sA}, s{sT}, {HN}\ns_add_u32 s{sA+1}, s{sT}, {HR}")
    R_, B_ = stats(HX, True, BETA)
    for i in range(8):
        I(f"v_pk_fma_f32 {vr(D1+2*i,2)}, {vr(HX+2*i,2)}, {vr(R_,2)}, {vr(B_,2)} op_sel_hi:[1,0,0] neg_lo:[0,0,1] neg_hi:[0,0,1]")
    for i in range(8): I(f"v_cvt_pk_bf16_f32 v{D1+16+i}, v{D1+2*i}, v{D1+2*i+1}")
    modal([f"buffer_store_dwordx4 {vr(D1+16+4*h,4)}, v{vHS}, {sr(S_WS,4)}, s{sA} offen offset:{1024*h}" for h in range(2)])
    for i in range(8): I(f"v_cvt_pk_bf16_f32 v{D1+24+i}, v{HX+2*i}, v{HX+2*i+1}")
    modal([f"buffer_store_dwordx4 {vr(D1+24+4*h,4)}, v{vHS}, {sr(S_WS,4)}, s{sA+1} offen offset:{1024*h}" for h in range(2)])
    stamp("Cdone")
    V.put(EC, 16); V.put(GC, 64); V.put(HX, 16); V.put(DB, 16); V.put(IN, 8); V.put(vCW); V.put(vCR); V.put(vHS); V.put(vSGN_ODD); V.put(T, 16)
    srd(S_WD, 16, 1792*1024); srd(S_OUT, 18, 2048*1024)
    I(f"v_lshlrev_b32 v{vL16}, 4, v{vL}")
    I(f"v_lshlrev_b32 v{t0}, 2, v{vQ}\nv_add_u32 v{t0}, v{t0}, v{vR}\nv_mul_u32_u24 v{t0}, 224, v{t0}\nv_lshl_add_u32 v{vG1}, v{vC}, 3, v{t0}\nv_add_u32 v{vG1+1}, {IMG_U}, v{vG1}")
    I(f"v_cmp_gt_u32 vcc, 2, v{vC}\nv_add_u32 v{t0}, 96, v{vG1}\nv_add_u32 v{t1}, {IMG_U+96-16+112}, v{vG1}\nv_cndmask_b32 v{vG1+2}, v{t1}, v{t0}, vcc")
    I(f"v_add_u32 v{t0}, {96+112}, v{vG1}\nv_add_u32 v{t1}, {IMG_U+96-16}, v{vG1}\nv_cndmask_b32 v{vG1+3}, v{t1}, v{t0}, vcc")
    I(f"v_lshlrev_b32 v{t0}, 2, v{vQ}\nv_add_u32 v{t0}, v{t0}, v{vR}\nv_bfe_u32 v{t1}, v{t0}, 1, 2\nv_lshlrev_b32 v{t0}, 7, v{t0}\nv_lshl_add_u32 v{t0}, v{t1}, 5, v{t0}\nv_lshl_add_u32 v{t0}, v{vC}, 3, v{t0}")
    I(f"v_mul_u32_u24 v{t1}, 12288, v{t2}\nv_add_u32 v{t1}, {STG}, v{t1}\nv_add_u32 v{vS2}, v{t0}, v{t1}")
    for ct in range(1, 4): I(f"v_xor_b32 v{vS2+ct}, {32*ct}, v{vS2}")
    I(f"v_lshrrev_b32 v{t0}, 3, v{vL}\nv_and_b32 v{t1}, 6, v{t0}\nv_and_b32 v{t3}, 7, v{vL}\nv_xor_b32 v{t1}, v{t1}, v{t3}\nv_lshlrev_b32 v{t1}, 4, v{t1}\nv_lshl_add_u32 v{vD2}, v{t0}, 10, v{t1}")
    I(f"v_bfe_u32 v{t3}, v{t0}, 1, 1\nv_mul_u32_u24 v{t3}, 56, v{t3}\nv_and_b32 v{t0}, 5, v{t0}\nv_add_u32 v{t0}, v{t0}, v{t3}\nv_lshl_add_u32 v{vD2+1}, v{t0}, 10, v{t1}")
    I(f"s_mul_i32 s62, s{sW}, {448*1024}\ns_and_b32 s58, s{sM}, 7\ns_lshl_b32 s58, s58, 7\ns_add_u32 s62, s62, s58\ns_mul_i32 s63, s{sW}, 12288\ns_add_u32 s63, s63, {STG}")
    I(f"s_lshl_b32 s{sT}, s{sPOS}, 5\ns_lshl_b32 s58, s{sW}, 3\ns_add_u32 s{sT}, s{sT}, s58\ns_add_u32 s{sT}, s{sT}, {FL3}")
    I(f"v_lshrrev_b32 v{vFL}, 4, v{vFL}")
    I(f"s_lshl_b32 s58, s{sG}, 10\ns_lshl_b32 s59, s{sW}, 8\ns_add_u32 s58, s58, s59\ns_add_u32 s{sA+5}, s58, {FL3}")
    I(f"s_lshl_b32 s58, s{sG}, 18\ns_lshl_b32 s59, s{sW}, 16\ns_add_u32 s58, s58, s59\ns_add_u32 s{sA}, s58, {HN}")
    for rt in range(1, 4): I(f"s_add_u32 s{sA+rt}, s{sA}, {16384*rt}")
    a.wait_vm0()
    stamp("ack3")
    I("s_mov_b64 exec, 1")
    modal([f"buffer_store_dwordx2 {vr(FLG,2)}, off, {sr(S_WS,4)}, s{sT}"])
    I("s_mov_b64 exec, -1")
    V.put(D1, 32); V.put(vW1, 7)
    def flagpoll(name, soff, pre=None):
        a.label(f"L_{name}")
        I(f"buffer_load_dwordx2 {vr(FV,2)}, v{vFL}, {sr(S_WS,4)}, {soff} offen sc1")
        a.wait_vm0(True)
        I(f"v_cmp_ne_u64 vcc, s[{sTAG}:{sTAG+1}], {vr(FV,2)}\ns_cbranch_vccz L_{name}ok")
        spin_check()
        I(f"s_branch L_{name}")
        a.label(f"L_{name}ok")
    flagpoll("f3", f"s{sA+5}")
    stamp("f3ok")
    ACC = V.get(112, 4); DEPTH = cfg.get('depth', 6); ACT = V.get(16*DEPTH, 4); WR_ = V.get(16, 4)
    def act_load(ks, rt):
        t = f"buffer_load_dwordx4 {vr(ACT+16*(ks%DEPTH)+4*rt,4)}, v{vL16}, {sr(S_WS,4)}, s{sA+rt} offen offset:{1024*(ks%4)} sc1"
        if ks % 4 == 3: t += f"\ns_add_u32 s{sA+rt}, s{sA+rt}, 4096"
        return t
    for ks in range(DEPTH-1):
        for rt in range(4): I(act_load(ks, rt))
    I("s_barrier")
    def w_read(n, hh):
        ks, j = divmod(n, 7)
        d = vr(WR_+4*(n%4)+2*hh, 2)
        if j < 3: return f"ds_read_b64_tr_b16 {d}, v{vG1} offset:{ks*3584+hh*112+j*32}"
        if j < 6: return f"ds_read_b64_tr_b16 {d}, v{vG1+1} offset:{ks*3584+(1-hh)*112+(j-3)*32}"
        return f"ds_read_b64_tr_b16 {d}, v{vG1+2+hh} offset:{ks*3584}"
    def w2_dma(k2, ii):
        hh, qq = ii >> 1, ii & 1
        if k2 < 8: fr, pat = 56*k2 + 8*ii, 0
        elif k2 < 12: fr, pat = 56*(2*(k2-8) + hh) + 32 + 8*qq, 0
        else: fr, pat = 56*(4*(k2-12) + 2*hh) + 48 + 2*qq, 1
        return (f"s_add_u32 s61, s62, {fr*1024}\ns_add_u32 m0, s63, {(k2%3)*4096+ii*1024}", f"buffer_load_dwordx4 v{vD2+pat}, {sr(S_WD,4)}, s61 offen lds")
    def w2_read(k2, ct, hh):
        return f"ds_read_b64_tr_b16 {ar(16*k2+4*ct+2*hh,2)}, v{vS2+ct} offset:{(k2%3)*4096+hh*2048}"
    LAG = cfg.get('lag', 3)
    w2_issue = {}; w2_rd = {}
    for k2 in range(14):
        w2_issue[k2] = (k2//3)*(LAG+1) + (k2 % 3)
        w2_rd[k2] = w2_issue[k2] + LAG
    w2tok = {}; w2rdtok = {}
    for n in range(3):
        for hh in range(2): I(w_read(n, hh))
    NM = 16*28
    for ks in range(16):
        fill = {i: [] for i in range(28)}
        for j in range(7):
            n = ks*7 + j + 3
            if n < 112:
                fill[4*j].append(('v', w_read(n, 0))); fill[4*j+1].append(('v', w_read(n, 1)))
        if ks + DEPTH - 1 < 16:
            for rt in range(4): fill[2+4*rt].append(('v', act_load(ks+DEPTH-1, rt)))
        for k2 in range(14):
            if w2_rd[k2] == ks:
                fill[0].insert(0, ('wt', k2))
                slots = [0, 1, 4, 5, 8, 9, 12, 13]
                for x in range(8): fill[slots[x]].append(('r2', (k2, w2_read(k2, x >> 1, x & 1))))
            if w2_issue[k2] == ks:
                for ii in range(4): fill[16+2*ii + (ii > 0)*0].append(('dma', (k2, ii)))
        for i in range(28):
            j, rt = divmod(i, 4); n = ks*7 + j
            d = vr(ACC+16*j+4*rt, 4)
            I(f"v_mfma_f32_16x16x32_bf16 {d}, {vr(WR_+4*(n%4),4)}, {vr(ACT+16*(ks%DEPTH)+4*rt,4)}, {d if ks else 0}")
            if i < 27:
                j2, rt2 = divmod(i+1, 4); a.need(vr(WR_+4*((ks*7+j2)%4),4) + " " + vr(ACT+16*(ks%DEPTH)+4*rt2,4))
            elif ks < 15: a.need(vr(WR_+4*((ks*7+7)%4),4) + " " + vr(ACT+16*((ks+1)%DEPTH),4))
            for kind, x in fill[i]:
                if kind == 'v': I(x)
                elif kind == 'wt': a.wait_tok(w2tok[x])
                elif kind == 'r2': w2rdtok[x[0]] = I(x[1])
                elif kind == 'dma':
                    if x[1] == 0 and x[0] >= 3: a.wait_tok(w2rdtok[x[0]-3])
                    s, v = w2_dma(*x); I(s); w2tok[x[0]] = I(v)
    stamp("G1done")
    I("s_barrier")
    I(f"s_lshl_b32 s58, s{sG}, 2\ns_add_u32 s58, s58, s{sW}\ns_lshl_b32 s58, s58, 5\ns_add_u32 s58, s58, s{sM}\ns_mul_i32 s{sA}, s58, 7168\ns_add_u32 s{sA}, s{sA}, {HH}\ns_add_u32 s{sA+1}, s{sA}, 4096")
    I(f"s_lshl_b32 s58, s58, 3\ns_add_u32 s{sA+2}, s58, {FL4}")
    I(f"s_lshr_b32 s58, s{sPOS}, 3\ns_lshl_b32 s58, s58, 5\ns_lshl_b32 s59, s{sW}, 3\ns_add_u32 s58, s58, s59\ns_mul_i32 s{sA+3}, s58, 7168\ns_add_u32 s{sA+3}, s{sA+3}, {HH}")
    I(f"s_lshl_b32 s58, s58, 3\ns_add_u32 s{sA+4}, s58, {FL4}\ns_add_u32 s{sA+5}, s{sA+4}, 0x2000\ns_add_u32 s{sT}, s{sA+2}, 0x2000")
    I(f"v_and_b32 v{vFL}, 56, v{vFL}")
    I(f"s_mov_b32 s58, {fhex(KAPPA)}\ns_mov_b32 s59, s58")
    GT = WR_
    HP = ACT
    def gelu(G, U, n, dst, tb):
        s = GT + tb
        for e in range(0, n, 2): I(f"v_pk_fma_f32 {vr(s+e,2)}, {vr(G+e,2)}, {vr(G+e,2)}, s[58:59]")
        for e in range(0, n, 2): I(f"v_pk_mul_f32 {vr(s+e,2)}, {vr(s+e,2)}, {vr(G+e,2)}")
        for e in range(n): I(f"v_exp_f32 v{s+e}, -v{s+e}")
        for e in range(0, n, 2): I(f"v_pk_mul_f32 {vr(G+e,2)}, {vr(G+e,2)}, {vr(U+e,2)}")
        for e in range(0, n, 2): I(f"v_pk_add_f32 {vr(s+e,2)}, {vr(s+e,2)}, 1.0 op_sel_hi:[1,0]")
        for e in range(n): I(f"v_rcp_f32 v{s+e}, v{s+e}")
        for e in range(0, n, 2): I(f"v_pk_mul_f32 {vr(G+e,2)}, {vr(G+e,2)}, {vr(s+e,2)}")
        for e in range(0, n, 2): I(f"v_cvt_pk_bf16_f32 v{dst+e//2}, v{G+e}, v{G+e+1}")
    step = [16]
    def w2_tail_step():
        ks = step[0]; step[0] += 1
        for k2 in range(14):
            if w2_rd[k2] == ks:
                a.wait_tok(w2tok[k2])
                for x in range(8): w2rdtok[k2] = I(w2_read(k2, x >> 1, x & 1))
        for k2 in range(14):
            if w2_issue[k2] == ks:
                a.wait_tok(w2rdtok[k2-3])
                for ii in range(4):
                    s, v = w2_dma(k2, ii); I(s); w2tok[k2] = I(v)
    def hstore(slot, r):
        return modal([f"buffer_store_dwordx4 {vr(r,4)}, v{vL16}, {sr(S_WS,4)}, s{sA+slot//4} offen offset:{1024*(slot%4)}"])
    for rt in range(4):
        h = HP + 4*(rt % 2)
        gelu(ACC+4*rt, ACC+48+4*rt, 4, h, 0); gelu(ACC+16+4*rt, ACC+64+4*rt, 4, h+2, 4)
        tk1 = hstore(rt, h)
        if rt % 2 == 0: w2_tail_step()
    for rp in range(2):
        h = HP + 4*rp
        gelu(ACC+32+8*rp, ACC+80+8*rp, 4, h, 0); gelu(ACC+36+8*rp, ACC+84+8*rp, 4, h+2, 4)
        hstore(4+rp, h)
    w2_tail_step()
    a.wait_tok(tk1)
    I("s_mov_b64 exec, 1")
    modal([f"buffer_store_dwordx2 {vr(FLG,2)}, off, {sr(S_WS,4)}, s{sA+2}"])
    I("s_mov_b64 exec, -1")
    for rt in range(4):
        m = ACC + 96 + 4*rt
        I(f"v_permlane32_swap_b32 v{m}, v{m+2}\nv_permlane32_swap_b32 v{m+1}, v{m+3}")
    for rt in range(4):
        m = ACC + 96 + 4*rt
        gelu(m, m+2, 2, HP+rt, 2*rt)
    hstore(6, HP)
    stamp("gelu")
    flagpoll("f4a", f"s{sA+4}")
    I("s_mov_b64 exec, 1")
    modal([f"buffer_store_dwordx2 {vr(FLG,2)}, off, {sr(S_WS,4)}, s{sT}"])
    I("s_mov_b64 exec, -1")
    stamp("f4a")
    V.put(ACC, 112); V.put(ACT, 16*DEPTH); V.put(WR_, 16)
    AC2 = V.get(64, 4)
    HF = V.get(16*8, 4)
    RES = V.get(8, 4)
    def h_load(k2, x):
        if k2 < 8: p, slot = k2, x
        elif k2 < 12: p, slot = 2*(k2-8) + (x & 1), 4 + (x >> 1)
        else: p, slot = 4*(k2-12) + x, 6
        off = p*7168 + slot*1024
        return f"s_add_u32 s60, s{sA+3}, {off & ~4095}\nbuffer_load_dwordx4 {vr(HF+16*(k2%8)+4*x,4)}, v{vL16}, {sr(S_WS,4)}, s60 offen offset:{off & 4095} sc1"
    for k2 in range(8):
        for x in range(4): I(h_load(k2, x))
    while step[0] <= max(w2_rd.values()): w2_tail_step()
    def mm(k2, rt, ct):
        d = vr(AC2+16*rt+4*ct, 4)
        I(f"v_mfma_f32_16x16x32_bf16 {d}, {ar(16*k2+4*ct,4)}, {vr(HF+16*(k2%8)+4*rt,4)}, {d if k2 else 0}")
    for k2 in range(2):
        for rt in range(4):
            for ct in range(4): mm(k2, rt, ct)
    flagpoll("f4b", f"s{sA+5}")
    vO, vRS, vPW, vPR = V.get(), V.get(), V.get(4, 1), V.get(2, 1)
    late = [h_load(k2, x) for k2 in range(8, 14) for x in range(4)]
    misc = [f"v_lshrrev_b32 v{t0}, 3, v{vL}", f"v_and_b32 v{t1}, 7, v{vL}", f"v_lshlrev_b32 v{t3}, 4, v{t1}", f"v_lshl_add_u32 v{vO}, v{t0}, 18, v{t3}",
            f"v_lshlrev_b32 v{t3}, 4, v{t0}", f"v_lshl_add_u32 v{vRS}, v{t1}, 8, v{t3}",
            f"v_lshlrev_b32 v{t1}, 1, v{t1}", f"v_xor_b32 v{t1}, v{t1}, v{t0}", f"v_lshl_add_u32 v{t0}, v{t2}, 4, v{t0}", f"v_lshlrev_b32 v{t0}, 8, v{t0}", f"v_lshl_add_u32 v{vPR}, v{t1}, 4, v{t0}", f"v_xor_b32 v{vPR+1}, 16, v{vPR}",
            f"v_and_b32 v{t0}, 7, v{vN}", f"v_xor_b32 v{t0}, v{t0}, v{vQ}", f"v_lshlrev_b32 v{t0}, 4, v{t0}", f"v_lshl_add_u32 v{t0}, v{vN}, 8, v{t0}", f"v_lshl_add_u32 v{vPW}, v{t2}, 14, v{t0}",
            f"v_xor_b32 v{vPW+1}, 64, v{vPW}", f"v_xor_b32 v{vPW+2}, 0x80, v{vPW}", f"v_xor_b32 v{vPW+3}, 0xc0, v{vPW}"]
    I(f"s_lshr_b32 s58, s{sPOS}, 3\ns_lshl_b32 s58, s58, 2\ns_add_u32 s58, s58, s{sW}\ns_and_b32 s59, s{sM}, 7")
    I(f"s_lshl_b32 s{sA}, s58, 14\ns_lshl_b32 s61, s59, 11\ns_add_u32 s{sA}, s{sA}, s61\ns_add_u32 s{sA}, s{sA}, {HR}")
    I(f"s_lshl_b32 s{sA+1}, s58, 11\ns_lshl_b32 s61, s59, 7\ns_add_u32 s{sA+1}, s{sA+1}, s61")
    for k2 in range(2, 8):
        for rt in range(4):
            for ct in range(4):
                mm(k2, rt, ct)
                if ct == 0: I(late.pop(0))
                elif misc: I(misc.pop(0))
    for p in range(2): I(f"buffer_load_dwordx4 {vr(RES+4*p,4)}, v{vRS}, {sr(S_WS,4)}, s{sA} offen offset:{128*p} sc1")
    for k2 in range(8, 12):
        b = HF + 16*(k2 % 8)
        for o in (0, 8): I(f"v_swap_b32 v{b+o+2}, v{b+o+4}\nv_swap_b32 v{b+o+3}, v{b+o+5}")
    for k2 in range(12, 14):
        b = HF + 16*(k2 % 8)
        for x in range(4):
            for y in range(x+1, 4): I(f"v_swap_b32 v{b+4*x+y}, v{b+4*y+x}")
    wr = []
    for rt in range(4):
        n = 0
        for k2 in range(8, 14):
            for ct in range(4):
                mm(k2, rt, ct); n += 1
                if wr and n >= 6 and n % 4 == 2: I(wr.pop(0))
        wr = [f"ds_write_b128 v{vPW+ct}, {vr(AC2+16*rt+4*ct,4)} offset:{4096*rt}" for ct in range(4)]
    for t in wr: I(t)
    stamp("G2done")
    a.wait_lg0(); I("s_barrier")
    PR = HF
    for p in range(2):
        for e in range(2):
            for j in range(4): I(f"ds_read_b128 {vr(PR+32*p+16*e+4*j,4)}, v{vPR+e} offset:{16384*j+2048*p}")
    RF = AC2
    unpack(RF, RES, 8)
    I(f"s_mov_b32 s58, {fhex(1/(BETA*BETA))}\ns_mov_b32 s59, s58")
    for p in range(2):
        for e in range(2):
            b = PR + 32*p + 16*e
            for o in (0, 2): I(f"v_pk_add_f32 {vr(b+o,2)}, {vr(b+o,2)}, {vr(b+4+o,2)}\nv_pk_add_f32 {vr(b+8+o,2)}, {vr(b+8+o,2)}, {vr(b+12+o,2)}")
            for o in (0, 2): I(f"v_pk_add_f32 {vr(b+o,2)}, {vr(b+o,2)}, {vr(b+8+o,2)}")
            for o in (0, 2): I(f"v_pk_fma_f32 {vr(b+o,2)}, {vr(b+o,2)}, s[58:59], {vr(RF+8*p+4*e+o,2)}")
            for o in (0, 2): I(f"v_cvt_pk_bf16_f32 v{RES+4*p+2*e+o//2}, v{b+o}, v{b+o+1}")
        I(f"buffer_store_dwordx4 {vr(RES+4*p,4)}, v{vO}, {sr(S_OUT,4)}, s{sA+1} offen offset:{1024*p} {cfg.get('outflag','')}")
    if dbg:
        a.wait_vm0(); stamp("end"); a.wait_lg0()
        I(f"s_lshl_b32 s58, s2, 2\ns_add_u32 s58, s58, s{sW}\ns_lshl_b32 s58, s58, 7\ns_add_u32 s58, s58, {STAMP}\ns_mov_b64 exec, 1")
        for i in range(nst[0]):
            I(f"v_mov_b32 v4, s{STS[i]}\nbuffer_store_dword v4, off, {sr(S_WS,4)}, s58 offset:{4*i}")
        I(f"v_mov_b32 v4, s{sSPIN}\nbuffer_store_dword v4, off, {sr(S_WS,4)}, s58 offset:120\nv_mov_b32 v4, s{sMODE}\nbuffer_store_dword v4, off, {sr(S_WS,4)}, s58 offset:124")
    a.label("L_end")
    I("s_endpgm")
    for n, lines in cfg.get('_tail', []):
        a.label(f"L_slow{n}")
        for t in lines: a.raw("  " + t + " sc1")
        a.raw("  s_nop 1")
        a.raw(f"  s_branch L_back{n}")
    a.raw(".p2align 8\nL_pad:\n.fill 8192, 4, 0xbf810000" if cfg.get('pad', True) else "")
    a.raw(f'''.section .rodata,"a"
.p2align 6
.amdhsa_kernel {NAME}_kernel
  .amdhsa_next_free_vgpr 512
  .amdhsa_next_free_sgpr 102
  .amdhsa_accum_offset 256
  .amdhsa_group_segment_fixed_size 0
  .amdhsa_kernarg_size 80
  .amdhsa_user_sgpr_count 2
  .amdhsa_user_sgpr_kernarg_segment_ptr 1
  .amdhsa_system_sgpr_workgroup_id_x 1
.end_amdhsa_kernel''')
    return a

if __name__ == "__main__":
    import json
    out = sys.argv[1]
    cfg = json.loads(sys.argv[2]) if len(sys.argv) > 2 else {}
    a = gen(cfg)
    hdr = ""
    open(out, "w").write(hdr + a.text())
    json.dump(cfg.get('stamp_names', []), open(out + ".stamps", "w"))
    print("instrs", sum(a.count.values()), "nops", a.count.get('s_nop', 0), "waits", a.count.get('s_waitcnt', 0))
```

```python
import sys, math
from asmlib import *
NAME = "sequential_preLN__spectral_gfnet__glu_gated_geglu__prompt"
BETA = struct.unpack('<f', struct.pack('<f', (0.044715 * 2 * math.sqrt(2/math.pi) * math.log2(math.e)) ** (1/3)))[0]
KAPPA = 2 * math.sqrt(2/math.pi) * math.log2(math.e) / BETA
X1, X2, HN, HR, HH = 0, 0x200000, 0x400000, 0x600000, 0x800000
FL0, FL3, FL4, GEN, STAMP = 0x1000000, 0x1010000, 0x1020000, 0x1030000, 0x1040000
WS_SIZE = 0x1100000
IMG_G, IMG_U, STG = 0, 57344, 114688
SCR_A, SCR_X, SCR_BI, SCR_BO, SCR_C = STG, STG + 8192, STG + 16384, STG + 16384 + 8448, STG
SPIN = 0x20000
S_WR, S_WI, S_W1, S_WD, S_WS, S_OUT = 24, 28, 32, 36, 40, 44
sW, sG, sM, sPOS, sTAG, sMODE, sSPIN, sXCC = 48, 49, 50, 51, 52, 54, 55, 56
sT = 57
sA = 64
STS = list(range(70, 102, 2)) + [10, 20, 4, 6, 8]

class Alloc:
    def __init__(self, lo, hi): self.free = list(range(lo, hi))
    def get(self, n=1, al=None):
        al = al or (2 if n > 1 else 1)
        fs = set(self.free)
        for b in self.free:
            if b % al == 0 and all((b + i) in fs for i in range(n)):
                for i in range(n): self.free.remove(b + i)
                return b
        raise Exception(f"out of vgprs ({n})")
    def put(self, b, n=1):
        for i in range(n):
            assert b + i not in self.free
            self.free.append(b + i)
        self.free.sort()

def gen(cfg):
    a = Asm(); I = a.I
    dbg = cfg.get('stamps', False)
    nst = [0]
    def stamp(name):
        if dbg and (name in cfg.get('extra', []) or (not name.startswith('_') and name not in cfg.get('skip', []))):
            I(f"s_memrealtime s[{STS[nst[0]]}:{STS[nst[0]]+1}]"); nst[0] += 1
            cfg.setdefault('stamp_names', []).append(name)
    V = Alloc(30, 256)
    vL, vN, vQ = 1, 2, 3
    t0, t1, t2, t3, FLG, FV, vFL, vL16, vG1, vS2, vD2, vR, vC = 4, 5, 6, 7, 8, 12, 16, 17, 18, 22, 26, 28, 29
    lab = [0]
    def srd(s, base, size):
        I(f"s_mov_b32 s{s}, s{base}\ns_mov_b32 s{s+1}, s{base+1}\ns_mov_b32 s{s+2}, {size}\ns_mov_b32 s{s+3}, 0x20000")
    def modal(lines):
        for t in lines: a.need(t)
        lab[0] += 1; n = lab[0]
        I(f"s_cmp_eq_u32 s{sMODE}, 0\ns_cbranch_scc1 L_slow{n}")
        tok = None
        for t in lines: tok = I(t)
        a.label(f"L_back{n}")
        cfg.setdefault('_tail', []).append((n, lines))
        return tok
    def spin_check():
        I(f"s_add_u32 s{sSPIN}, s{sSPIN}, 1\ns_cmp_ge_u32 s{sSPIN}, {SPIN}\ns_cbranch_scc1 L_end")

    a.raw(f"; @launch grid=(256,1,1) block=(256,1,1) lds=163840")
    a.raw('.amdgcn_target "amdgcn-amd-amdhsa--gfx950"\n.text')
    a.raw(f".globl {NAME}_kernel\n.p2align 8\n.type {NAME}_kernel,@function\n{NAME}_kernel:")
    I("s_cmp_ge_u32 s2, 256\ns_cbranch_scc0 L_go\ns_endpgm")
    a.label("L_go")
    I("s_load_dwordx16 s[4:19], s[0:1], 0\ns_load_dwordx4 s[20:23], s[0:1], 64")
    stamp("start")
    I(f"s_and_b32 s{sG}, s2, 7\ns_lshr_b32 s{sM}, s2, 3\ns_lshl_b32 s{sPOS}, s{sG}, 5\ns_add_u32 s{sPOS}, s{sPOS}, s{sM}")
    XR = V.get(8, 4)
    I(f"v_lshrrev_b32 v{t0}, 5, v0\nv_and_b32 v{t1}, 31, v0\nv_lshlrev_b32 v{t0}, 18, v{t0}\nv_lshlrev_b32 v{t1}, 4, v{t1}\ns_lshl_b32 s{sT}, s{sPOS}, 10")
    I(f"v_add3_u32 v{t0}, v{t0}, v{t1}, s{sT}")
    I(f"v_and_b32 v{vL}, 63, v0\nv_lshrrev_b32 v{t2}, 6, v0\nv_and_b32 v{vN}, 15, v0\nv_bfe_u32 v{vQ}, v0, 4, 2\nv_readfirstlane_b32 s{sW}, v{t2}")
    I(f"global_load_dwordx4 {vr(XR,4)}, v{t0}, s[4:5]\nglobal_load_dwordx4 {vr(XR+4,4)}, v{t0}, s[4:5] offset:512")
    I(f"s_add_u32 s{sT+1}, s22, {GEN}\ns_addc_u32 s{sT+2}, s23, 0" .replace(f"s{sT+1}", "s58").replace(f"s{sT+2}", "s59"))
    I(f"s_load_dwordx2 s[{sTAG}:{sTAG+1}], s[58:59], 0")
    srd(S_WS, 22, WS_SIZE)
    I(f"s_mov_b32 s{sSPIN}, 0\ns_getreg_b32 s{sXCC}, hwreg(HW_REG_XCC_ID)\ns_and_b32 s{sXCC}, s{sXCC}, 15")
    vX1S, vX2S = V.get(), V.get()
    ONES = V.get(4, 4)
    for i in range(4): I(f"v_mov_b32 v{ONES+i}, -1")
    I(f"v_lshlrev_b32 v{t1}, 11, v{vQ}\nv_lshl_add_u32 v{t1}, v{vN}, 4, v{t1}\nv_lshl_add_u32 v{vX1S}, v{t2}, 8, v{t1}")
    I(f"v_bfe_u32 v{t1}, v0, 3, 4\nv_lshlrev_b32 v{t1}, 9, v{t1}\nv_lshrrev_b32 v{t3}, 7, v0\nv_lshl_add_u32 v{t1}, v{t3}, 7, v{t1}\nv_and_b32 v{t3}, 7, v0\nv_lshl_add_u32 v{vX2S}, v{t3}, 4, v{t1}")
    I(f"s_lshl_b32 s{sA}, s{sPOS}, 13\ns_add_u32 s{sA+1}, s{sA}, {X2}")
    I(f"buffer_store_dwordx4 {vr(ONES,4)}, v{vX1S}, {sr(S_WS,4)}, s{sA} offen sc1")
    I(f"buffer_store_dwordx4 {vr(ONES,4)}, v{vX1S}, {sr(S_WS,4)}, s{sA} offen offset:1024 sc1")
    I(f"buffer_store_dwordx4 {vr(ONES,4)}, v{vX2S}, {sr(S_WS,4)}, s{sA+1} offen sc1")
    tok_clr = I(f"buffer_store_dwordx4 {vr(ONES,4)}, v{vX2S}, {sr(S_WS,4)}, s{sA+1} offen offset:256 sc1")
    stamp('_clr')
    PF = V.get(2)
    I(f"s_getpc_b64 s[60:61]\nv_lshlrev_b32 v{t1}, 7, v0")
    I(f"global_load_dword v{PF}, v{t1}, s[60:61]")
    srd(S_WR, 6, 2048*514); srd(S_WI, 8, 2048*514)
    WRAW = V.get(8); WSP = V.get(8)
    vWG = V.get()
    def w_gather():
        I(f"v_mul_u32_u24 v{t1}, {8*514}, v{vN}\nv_mul_u32_u24 v{t3}, {512*514}, v{vQ}\nv_add_u32 v{vWG}, v{t1}, v{t3}")
        I(f"s_lshr_b32 s{sT}, s{sM}, 3\ns_lshl_b32 s{sT}, s{sT}, 2\ns_and_b32 s58, s{sM}, 7\ns_lshl_b32 s58, s58, 6\ns_add_u32 s{sT}, s{sT}, s58\ns_lshl_b32 s58, s{sW}, 4\ns_add_u32 s{sA+2}, s{sT}, s58")
        I(f"s_mul_i32 s58, s{sG}, 514\ns_add_u32 s{sT}, s{sA+2}, s58")
        for i in range(4):
            I(f"buffer_load_dword v{WRAW+i}, v{vWG}, {sr(S_WR,4)}, s{sT} offen\nbuffer_load_dword v{WRAW+4+i}, v{vWG}, {sr(S_WI,4)}, s{sT} offen")
            if i < 3: I(f"s_add_u32 s{sT}, s{sT}, {128*514}")
        I(f"s_cmp_lg_u32 s{sA+2}, 0\ns_cbranch_scc1 L_nosp")
        for i in range(4):
            I(f"buffer_load_ushort v{WSP+i}, v{vWG}, {sr(S_WR,4)}, s58 offen offset:512", track=False)
            I(f"buffer_load_ushort v{WSP+4+i}, v{vWG}, {sr(S_WI,4)}, s58 offen offset:512", track=False)
            I(f"s_add_u32 s58, s58, {128*514}")
        a.label("L_nosp")
    stamp('_pf')
    if cfg.get('wg_at', 'start') == 'start': w_gather()
    stamp('_gath')
    vW1 = V.get(7, 1)
    I(f"s_lshr_b32 s{sT}, s{sW}, 1\ns_cmp_eq_u32 s{sT}, 0\ns_cselect_b32 s{S_W1}, s12, s14\ns_cselect_b32 s{S_W1+1}, s13, s15\ns_mov_b32 s{S_W1+2}, {512*3584}\ns_mov_b32 s{S_W1+3}, 0x20000")
    for nn in range(7):
        I(f"v_add_u32 v{t0}, {64*nn}, v{vL}\nv_mul_u32_u24 v{t1}, 9363, v{t0}\nv_lshrrev_b32 v{t1}, 16, v{t1}")
        I(f"v_mul_u32_u24 v{t3}, 7, v{t1}\nv_sub_u32 v{t0}, v{t0}, v{t3}\nv_xor_b32 v{t1}, s{sT}, v{t1}")
        I(f"v_and_b32 v{t3}, 1, v{t1}\nv_lshlrev_b32 v{t3}, 2, v{t3}\nv_and_or_b32 v{t3}, v{t1}, 56, v{t3}\nv_bfe_u32 v{t1}, v{t1}, 1, 2\nv_add_u32 v{t1}, v{t1}, v{t3}")
        I(f"v_mul_u32_u24 v{t1}, 3584, v{t1}\nv_lshl_add_u32 v{vW1+nn}, v{t0}, 4, v{t1}")
    I(f"s_and_b32 s58, s{sW}, 1\ns_mul_i32 s59, s58, {64*3584}\ns_mul_i32 s{sA+3}, s{sM}, 112\ns_add_u32 s{sA+3}, s{sA+3}, s59")
    I(f"s_mul_i32 s58, s58, 7168\ns_mul_i32 s59, s{sT}, {IMG_U}\ns_add_u32 s{sA+4}, s58, s59")
    w1tok = []
    def w1_round():
        r = len(w1tok)
        for nn in range(7):
            I(f"s_add_u32 m0, s{sA+4}, {r*2*7168 + nn*1024}")
            tk = I(f"buffer_load_dwordx4 v{vW1+nn}, {sr(S_W1,4)}, s{sA+3} offen lds")
        I(f"s_add_u32 s{sA+3}, s{sA+3}, {2*64*3584}")
        w1tok.append(tk)
    W1AT = cfg.get('w1_at', ['start', 'xarr', 'x1ok', 'x2ok'])
    def w1_point(name):
        for p in W1AT:
            if p == name: w1_round()
    stamp('_w1a')
    w1_point('start')
    stamp('_w1b')
    EA = V.get(16, 4)
    GA = V.get(64, 4)
    fq, fn = V.get(), V.get()
    I(f"v_cvt_f32_u32 v{fq}, v{vQ}\nv_cvt_f32_u32 v{fn}, v{vN}")
    vSGN_ODD = V.get()
    I(f"v_and_b32 v{t0}, 1, v{vN}\nv_mul_u32_u24 v{t0}, 0x8000, v{t0}\nv_lshl_or_b32 v{vSGN_ODD}, v{t0}, 16, v{t0}")
    T = V.get(16, 4)
    I(f"v_lshrrev_b32 v{t0}, 1, v{vN}\nv_mul_u32_u24 v{t1}, v{t0}, v{vQ}\nv_and_b32 v{t3}, 1, v{vN}\nv_lshl_add_u32 v{t1}, v{t3}, 1, v{t1}\nv_cvt_f32_u32 v{t1}, v{t1}\nv_mul_f32 v{t1}, 0.125, v{t1}".replace("0.125", fhex(0.125)))
    I(f"v_and_b32 v{t0}, 1, v{t0}\nv_mul_u32_u24 v{t0}, 0x8000, v{t0}\nv_lshl_or_b32 v{t0}, v{t0}, 16, v{t0}")
    I(f"v_cvt_f32_u32 v{t3}, v{t2}\nv_mul_f32 v{t3}, {fhex(0.25)}, v{t3}")
    for cb in range(2):
        if cb: I(f"v_add_f32 v{t3}, {fhex(0.125)}, v{t3}")
        I(f"v_add_f32 v{T+1}, v{t1}, v{t3}\nv_add_f32 v{T+2}, v{T+1}, v{t3}\nv_add_f32 v{T+3}, v{T+2}, v{t3}")
        I(f"v_cos_f32 v{T}, v{t1}\nv_cos_f32 v{T+1}, v{T+1}\nv_cos_f32 v{T+2}, v{T+2}\nv_cos_f32 v{T+3}, v{T+3}")
        e = EA + 8*cb
        I(f"v_cvt_pk_f16_f32 v{e}, v{T}, v{T+1}\nv_cvt_pk_f16_f32 v{e+1}, v{T+2}, v{T+3}")
        if cb: I(f"v_xor_b32 v{e+2}, 0x80008000, v{e}\nv_xor_b32 v{e+3}, 0x80008000, v{e+1}")
        else: I(f"v_mov_b32 v{e+2}, v{e}\nv_mov_b32 v{e+3}, v{e+1}")
        for i in range(4): I(f"v_xor_b32 v{e+4+i}, v{t0}, v{e+i}")
    def recur(nch, kf, a0, nsteps, scale, dst, cvt, fix=None):
        TW = V.get(2*nch, 2); P = V.get(4*nch, 2)
        for ch in range(nch):
            p = P + 4*ch
            I(f"v_add_f32 v{p+3}, v{a0[ch]}, v{kf[ch]}\nv_cos_f32 v{TW+2*ch}, v{kf[ch]}\nv_cos_f32 v{p}, v{a0[ch]}\nv_sin_f32 v{p+1}, v{a0[ch]}\nv_cos_f32 v{p+2}, v{p+3}\nv_sin_f32 v{p+3}, v{p+3}")
        I(f"s_mov_b32 s58, {fhex(scale)}")
        for ch in range(nch):
            p = P + 4*ch
            I(f"v_add_f32 v{TW+2*ch}, v{TW+2*ch}, v{TW+2*ch}")
            I(f"v_pk_mul_f32 {vr(p,2)}, {vr(p,2)}, s[58:59] op_sel_hi:[1,0]\nv_pk_mul_f32 {vr(p+2,2)}, {vr(p+2,2)}, s[58:59] op_sel_hi:[1,0]")
        for jp in range(nsteps//2):
            for ch in range(nch):
                p = P + 4*ch; rc, rs = dst(ch, jp)
                if fix and jp == 0 and fix(ch) is not None:
                    I(f"v_mul_f32 v{rc}, v{p}, v{fix(ch)}\n{cvt} v{rc}, v{rc}, v{p+2}")
                else: I(f"{cvt} v{rc}, v{p}, v{p+2}")
                I(f"{cvt} v{rs}, v{p+1}, v{p+3}")
            if jp + 1 < nsteps//2:
                for o in (0, 2):
                    for ch in range(nch):
                        p = P + 4*ch
                        I(f"v_pk_fma_f32 {vr(p+o,2)}, {vr(p+2-o,2)}, {vr(TW+2*ch,2)}, {vr(p+o,2)} op_sel_hi:[1,0,1] neg_lo:[0,0,1] neg_hi:[0,0,1]")
        V.put(TW, 2*nch); V.put(P, 4*nch)
    I(f"v_lshlrev_b32 v{t0}, 4, v{vN}\nv_lshl_add_u32 v{t0}, v{t2}, 1, v{t0}\nv_mul_f32 v{t3}, {fhex(16.0)}, v{fq}")
    for u in range(4):
        if u == 0:
            I(f"v_mov_b32 v{T}, 0x100\nv_cmp_eq_u32 vcc, 0, v{t0}\nv_cndmask_b32 v{T}, v{t0}, v{T}, vcc")
        else: I(f"v_add_u32 v{T+u}, {(u&1) + 8*(u>>1)}, v{t0}")
        I(f"v_cvt_f32_u32 v{T+u}, v{T+u}\nv_mul_f32 v{T+u}, {fhex(1/512)}, v{T+u}\nv_mul_f32 v{T+4+u}, v{T+u}, v{t3}")
    recur(4, [T+u for u in range(4)], [T+4+u for u in range(4)], 16, 0.125,
          lambda u, jp: (GA + 16*u + 8*(jp//4) + jp % 4, GA + 16*u + 8*(jp//4) + 4 + jp % 4), "v_cvt_pk_f16_f32")
    vAW = V.get(2, 1); vAR = V.get(4, 1)
    I(f"v_lshrrev_b32 v{t0}, 5, v0\nv_and_b32 v{t1}, 31, v0\nv_lshlrev_b32 v{t1}, 4, v{t1}\nv_lshl_add_u32 v{t1}, v{t0}, 10, v{t1}")
    vXW = V.get()
    I(f"v_add_u32 v{vXW}, {SCR_X}, v{t1}")
    I(f"v_and_b32 v{t0}, 1, v{t0}\nv_lshlrev_b32 v{t0}, 3, v{t0}\nv_and_or_b32 v{t0}, v0, 16, v{t0}\nv_xor_b32 v{t1}, v{t0}, v{t1}\nv_add_u32 v{vAW}, {SCR_A}, v{t1}\nv_xor_b32 v{vAW+1}, 8, v{vAW}")
    I(f"v_lshrrev_b32 v{vR}, 2, v{vN}\nv_and_b32 v{vC}, 3, v{vN}")
    I(f"v_lshlrev_b32 v{t0}, 10, v{vQ}\nv_lshl_add_u32 v{t0}, v{vR}, 7, v{t0}\nv_lshl_add_u32 v{t0}, v{vC}, 5, v{t0}")
    I(f"v_and_b32 v{t1}, 1, v{vQ}\nv_and_or_b32 v{t1}, v{vR}, 2, v{t1}\nv_lshl_add_u32 v{t0}, v{t1}, 3, v{t0}\nv_add_u32 v{vAR}, {SCR_A}, v{t0}")
    for tp in range(1, 4): I(f"v_xor_b32 v{vAR+tp}, {8*tp}, v{vAR}")
    I(f"s_add_u32 s{sTAG}, s{sTAG}, 0x7f4a7c15\ns_addc_u32 s{sTAG+1}, s{sTAG+1}, 0x9e3779b9")
    I(f"v_mov_b32 v{FLG}, s{sTAG}\nv_mov_b32 v{FLG+1}, s{sTAG+1}\nv_mov_b32 v{FLG+2}, s{sXCC}\nv_mov_b32 v{FLG+3}, 0")
    I(f"s_lshl_b32 s{sT}, s{sPOS}, 7\ns_lshl_b32 s58, s{sW}, 4\ns_add_u32 s{sT}, s{sT}, s58\ns_add_u32 s{sA+5}, s{sT}, {FL0}")
    stamp("tabA")
    XF = V.get(16, 4)
    def unpack(dst, src, n):
        for i in range(n):
            I(f"v_lshlrev_b32 v{dst+2*i}, 16, v{src+i}\nv_and_b32 v{dst+2*i+1}, 0xffff0000, v{src+i}")
    a.need(vr(XR, 8))
    stamp("xarr")
    w1_point('xarr')
    unpack(XF, XR, 8)
    def stats(X, wide, extra_scale):
        S, Q2 = T, T + 4
        I(f"v_pk_add_f32 {vr(S,2)}, {vr(X,2)}, {vr(X+2,2)}\nv_pk_add_f32 {vr(S+2,2)}, {vr(X+4,2)}, {vr(X+6,2)}")
        I(f"v_pk_mul_f32 {vr(Q2,2)}, {vr(X,2)}, {vr(X,2)}\nv_pk_mul_f32 {vr(Q2+2,2)}, {vr(X+2,2)}, {vr(X+2,2)}")
        for i in range(4, 16, 2):
            o = (i//2 % 2)*2
            if i >= 8: I(f"v_pk_add_f32 {vr(S+o,2)}, {vr(S+o,2)}, {vr(X+i,2)}")
            I(f"v_pk_fma_f32 {vr(Q2+o,2)}, {vr(X+i,2)}, {vr(X+i,2)}, {vr(Q2+o,2)}")
        I(f"v_pk_add_f32 {vr(S,2)}, {vr(S,2)}, {vr(S+2,2)}\nv_pk_add_f32 {vr(Q2,2)}, {vr(Q2,2)}, {vr(Q2+2,2)}")
        I(f"v_add_f32 v{S}, v{S}, v{S+1}\nv_add_f32 v{Q2}, v{Q2}, v{Q2+1}")
        dp = "row_mask:0xf bank_mask:0xf"
        if not wide:
            I(f"v_permlane16_swap_b32 v{S}, v{Q2}\nv_add_f32 v{S}, v{S}, v{Q2}")
            for d in ("quad_perm:[1,0,3,2]", "quad_perm:[2,3,0,1]", "row_half_mirror", "row_mirror"):
                I(f"v_add_f32_dpp v{S}, v{S}, v{S} {d} {dp}")
            I(f"v_mov_b32 v{Q2}, v{S}\nv_permlane16_swap_b32 v{S}, v{Q2}")
        else:
            I(f"v_permlane32_swap_b32 v{S}, v{Q2}\nv_add_f32 v{S}, v{S}, v{Q2}")
            for d in ("quad_perm:[2,3,0,1]", "row_ror:4", "row_ror:8"):
                I(f"v_add_f32_dpp v{S}, v{S}, v{S} {d} {dp}")
            I(f"v_mov_b32 v{Q2}, v{S}\nv_permlane16_swap_b32 v{S}, v{Q2}\nv_add_f32 v{S}, v{S}, v{Q2}")
            I(f"v_mov_b32 v{Q2}, v{S}\nv_permlane32_swap_b32 v{S}, v{Q2}")
        I(f"v_mul_f32 v{S}, {fhex(1/512)}, v{S}\nv_mul_f32 v{Q2}, {fhex(1/512)}, v{Q2}\nv_fma_f32 v{Q2}, -v{S}, v{S}, v{Q2}")
        I(f"v_max_f32 v{Q2}, 0, v{Q2}\nv_add_f32 v{Q2}, {fhex(1e-5)}, v{Q2}\nv_rsq_f32 v{Q2}, v{Q2}\nv_mul_f32 v{Q2}, {fhex(extra_scale)}, v{Q2}\nv_mul_f32 v{S}, v{S}, v{Q2}")
        return Q2, S
    R_, B_ = stats(XF, False, 0.125)
    a.wait_tok(tok_clr)
    I(f"s_mov_b64 exec, 1\nbuffer_store_dwordx4 {vr(FLG,4)}, off, {sr(S_WS,4)}, s{sA+5} sc1\ns_mov_b64 exec, -1")
    XN = V.get(8, 4)
    for i in range(8):
        I(f"v_pk_fma_f32 {vr(XF+2*i,2)}, {vr(XF+2*i,2)}, {vr(R_,2)}, {vr(B_,2)} op_sel_hi:[1,0,0] neg_lo:[0,0,1] neg_hi:[0,0,1]")
    for i in (0, 1, 4, 5, 2, 3, 6, 7):
        I(f"v_cvt_pk_f16_f32 v{XN+i}, v{XF+2*i}, v{XF+2*i+1}")
        if i == 5: I(f"ds_write2_b64 v{vAW}, {vr(XN,2)}, {vr(XN+4,2)} offset0:0 offset1:64")
    I(f"ds_write2_b64 v{vAW+1}, {vr(XN+2,2)}, {vr(XN+6,2)} offset0:0 offset1:64")
    a.wait_lg0(); I("s_barrier")
    V.put(XN, 8); V.put(XF, 16); V.put(ONES, 4)
    AF = V.get(32, 4)
    for tp in range(4):
        for ks in range(2):
            for hh in range(2):
                I(f"ds_read_b64_tr_b16 {vr(AF+8*tp+4*ks+2*hh,2)}, v{vAR+tp} offset:{ks*4096+hh*512}")
    D1 = V.get(32, 4)
    for tp in range(4):
        for ks in range(2):
            for cb in range(2):
                d = D1 + 16*cb + 4*tp
                I(f"v_mfma_f32_16x16x32_f16 {vr(d,4)}, {vr(AF+8*tp+4*ks,4)}, {vr(EA+8*cb+4*ks,4)}, {vr(d,4) if ks else 0}")
    Y1, Y2 = AF, AF + 16
    D2 = T
    for ks2 in range(2):
        for cb in range(2):
            for e in range(4):
                d = D1 + 16*cb + 8*ks2 + 2*e
                I(f"v_cvt_pk_f16_f32 v{Y1+8*cb+4*ks2+e}, v{d}, v{d+1}")
        for u in range(4):
            I(f"v_mfma_f32_16x16x32_f16 {vr(D2+4*u,4)}, {vr(Y1+8*(u&1)+4*ks2,4)}, {vr(GA+16*u+8*ks2,4)}, {vr(D2+4*u,4) if ks2 else 0}")
            for e in range(2):
                x = 8*((u>>1)) + 4*ks2 + 2*(u&1) + e
                I(f"v_xor_b32_dpp v{Y2+x}, v{Y1+x}, v{vSGN_ODD} quad_perm:[1,0,3,2] row_mask:0xf bank_mask:0xf")
        for u in range(4):
            I(f"v_mfma_f32_16x16x32_f16 {vr(D2+4*u,4)}, {vr(Y2+8*(u&1)+4*ks2,4)}, {vr(GA+16*u+8*ks2+4,4)}, {vr(D2+4*u,4)}")
    O = D1
    for u in range(4):
        for b in range(2):
            I(f"v_cvt_pk_f16_f32 v{O+4*b+u}, v{D2+4*u+2*b}, v{D2+4*u+2*b+1}")
        for b in range(2):
            I(f"v_min_u32 v{O+4*b+u}, -2, v{O+4*b+u}")
    I(f"buffer_store_dwordx4 {vr(O,4)}, v{vX1S}, {sr(S_WS,4)}, s{sA} offen sc1")
    I(f"buffer_store_dwordx4 {vr(O+4,4)}, v{vX1S}, {sr(S_WS,4)}, s{sA} offen offset:1024 sc1")
    stamp("Adone")
    V.put(EA, 16); V.put(GA, 64); V.put(AF, 32); V.put(vAW, 2); V.put(vAR, 4); V.put(vX1S)
    vX1L = V.get()
    I(f"v_lshrrev_b32 v{t0}, 7, v0\nv_bfe_u32 v{t1}, v0, 1, 2\nv_lshlrev_b32 v{t1}, 4, v{t1}\nv_lshl_add_u32 v{t0}, v{t0}, 6, v{t1}\nv_bfe_u32 v{t1}, v0, 3, 4\nv_add_u32 v{t0}, v{t0}, v{t1}")
    I(f"v_lshlrev_b32 v{vFL}, 7, v{t0}\nv_and_b32 v{t1}, 1, v0\nv_lshlrev_b32 v{t1}, 4, v{t1}\nv_lshl_add_u32 v{vX1L}, v{t0}, 13, v{t1}")
    I(f"s_lshr_b32 s{sT}, s{sM}, 3\ns_lshl_b32 s{sT}, s{sT}, 4\ns_add_u32 s{sA+5}, s{sT}, {FL0}\ns_add_u32 s62, s{sA+5}, {128*128}")
    flag_loads = [f"buffer_load_dwordx2 {vr(FV,2)}, v{vFL}, {sr(S_WS,4)}, s{sA+5} offen sc1", f"buffer_load_dwordx2 {vr(FV+2,2)}, v{vFL}, {sr(S_WS,4)}, s62 offen sc1"]
    for t in flag_loads: I(t)
    if cfg.get('wg_at') == 'adone': w_gather()
    V.put(D1, 32)
    HX = V.get(16, 4)
    I(f"ds_write_b128 v{vXW}, {vr(XR,4)}\nds_write_b128 v{vXW}, {vr(XR+4,4)} offset:512")
    I(f"v_and_b32 v{t0}, 1, v{vN}\nv_lshl_add_u32 v{t0}, v{t2}, 1, v{t0}\nv_lshlrev_b32 v{t0}, 10, v{t0}\nv_lshrrev_b32 v{t1}, 1, v{vN}\nv_lshl_add_u32 v{t0}, v{t1}, 7, v{t0}\nv_lshl_add_u32 v{t0}, v{vQ}, 4, v{t0}\nv_add_u32 v{t0}, {SCR_X}, v{t0}")
    I(f"ds_read_b128 {vr(XR,4)}, v{t0}\nds_read_b128 {vr(XR+4,4)}, v{t0} offset:64")
    V.put(vXW)
    MB = V.get(32, 4)
    TW1, TW2 = V.get(8, 2), V.get(8, 2)
    WF = V.get(16, 2)
    fp1 = V.get()
    I(f"v_cvt_f32_u32 v{fp1}, s{sG}")
    for i in range(4): I(f"v_fma_f32 v{T+i}, v{fq}, 4.0, {['0','1.0','2.0','2.0'][i]}")
    I(f"v_add_f32 v{T+3}, 1.0, v{T+3}\nv_mul_f32 v{t0}, {fhex(8.0)}, v{fn}\nv_add_f32 v{t0}, v{t0}, v{fp1}")
    def cs(ang, scale=None):
        for i in range(4): I(f"v_cos_f32 v{T+8+i}, v{ang+i}\nv_sin_f32 v{T+12+i}, v{ang+i}")
        if scale:
            for i in range(8): I(f"v_mul_f32 v{T+8+i}, {fhex(scale)}, v{T+8+i}")
    def frag(st, cvt, fwd):
        for i in range(4):
            c, s = f"v{T+8+i}", f"v{T+12+i}"
            if fwd: I(f"{cvt} v{MB+8*st+i}, {c}, {s}\n{cvt} v{MB+8*st+4+i}, -{s}, {c}")
            else: I(f"{cvt} v{MB+8*st+i}, {c}, -{s}\n{cvt} v{MB+8*st+4+i}, {s}, {c}")
    I(f"v_mul_f32 v{t1}, {fhex(1/128)}, v{t0}")
    for i in range(4): I(f"v_mul_f32 v{T+4+i}, v{T+i}, v{t1}")
    cs(T+4, 0.25); frag(0, "v_cvt_pk_f16_f32", True)
    for i in range(4):
        I(f"v_mul_f32 v{T+4+i}, {fhex(-1/16)}, v{T+4+i}")
    for i in range(4): I(f"v_cos_f32 v{TW1+i}, v{T+4+i}\nv_sin_f32 v{TW1+4+i}, v{T+4+i}")
    I(f"v_mul_f32 v{t1}, {fhex(1/16)}, v{fn}")
    for i in range(4): I(f"v_mul_f32 v{T+4+i}, v{T+i}, v{t1}")
    cs(T+4); frag(1, "v_cvt_pk_f16_f32", True); frag(2, "v_cvt_pk_bf16_f32", False)
    I(f"v_mul_f32 v{t1}, {fhex(1/128)}, v{fn}\ns_mov_b32 s58, {fhex(8.0)}")
    for i in range(4): I(f"v_fma_f32 v{T+4+i}, v{T+i}, s58, v{fp1}\nv_mul_f32 v{T+4+i}, v{T+4+i}, v{t1}")
    cs(T+4); frag(3, "v_cvt_pk_bf16_f32", False)
    for i in range(4): I(f"v_mul_f32 v{T+4+i}, {fhex(1/16)}, v{T+4+i}")
    for i in range(4): I(f"v_cos_f32 v{TW2+i}, v{T+4+i}\nv_sin_f32 v{TW2+4+i}, v{T+4+i}")
    V.put(fp1)
    unpack(HX, XR, 8); V.put(XR, 8)
    vBW, vBR, vOW, vOR = V.get(), V.get(), V.get(), V.get()
    I(f"v_and_b32 v{t0}, 1, v0\nv_mul_u32_u24 v{t0}, 4160, v{t0}\nv_lshrrev_b32 v{t1}, 1, v0\nv_lshl_add_u32 v{t0}, v{t1}, 2, v{t0}\nv_add_u32 v{vBW}, {SCR_BI}, v{t0}\nv_add_u32 v{vOR}, {SCR_BO}, v{t0}")
    I(f"v_lshlrev_b32 v{t0}, 4, v{vL}\nv_lshl_add_u32 v{t1}, v{t2}, 11, v{t0}\nv_lshrrev_b32 v{t3}, 1, v{t2}\nv_lshl_add_u32 v{t1}, v{t3}, 6, v{t1}\nv_add_u32 v{vBR}, {SCR_BI}, v{t1}")
    I(f"v_lshl_add_u32 v{t0}, v{t2}, 10, v{t0}\nv_add_u32 v{vOW}, {SCR_BO}, v{t0}")
    I(f"s_lshl_b32 s{sT}, s{sG}, 10\ns_lshl_b32 s58, s{sM}, 5\ns_add_u32 s{sA}, s{sT}, s58\ns_add_u32 s63, s{sA}, 0x100000")
    stamp("tabB")
    a.wait_vm0()
    stamp("ack1")
    a.label("L_f0")
    I(f"v_cmp_ne_u64 vcc, s[{sTAG}:{sTAG+1}], {vr(FV,2)}\nv_cmp_ne_u64 s[58:59], s[{sTAG}:{sTAG+1}], {vr(FV+2,2)}\ns_or_b64 vcc, vcc, s[58:59]\ns_cbranch_vccz L_f0ok")
    spin_check()
    for t in flag_loads: I(t)
    a.wait_vm0(); I("s_branch L_f0")
    a.label("L_f0ok")
    IN = V.get(8, 4)
    def poll(name, loads, fill=None):
        for t in loads: I(t)
        if fill: fill()
        a.label(f"L_{name}")
        a.wait_vm0(True)
        I(f"v_max3_u32 v{t0}, v{IN}, v{IN+1}, v{IN+2}\nv_max3_u32 v{t1}, v{IN+3}, v{IN+4}, v{IN+5}\nv_max3_u32 v{t0}, v{t0}, v{IN+6}, v{IN+7}\nv_max_u32 v{t0}, v{t0}, v{t1}")
        I(f"v_cmp_eq_u32 vcc, -1, v{t0}\ns_cbranch_vccz L_{name}ok")
        spin_check()
        for t in loads: I(t, track=False)
        I(f"s_branch L_{name}")
        a.label(f"L_{name}ok")
    EC = V.get(16, 4); GC = V.get(64, 4)
    def fill1():
        for ri in range(2):
            for i in range(4):
                I(f"v_lshlrev_b32 v{WF+4*ri+i}, 16, v{WRAW+4*ri+i}\nv_and_b32 v{WF+8+4*ri+i}, 0xffff0000, v{WRAW+4*ri+i}")
        I(f"s_cmp_lg_u32 s{sA+2}, 0\ns_cbranch_scc1 L_nosp2")
        for i in range(8): I(f"v_lshlrev_b32 v{WF+i}, 16, v{WSP+i}")
        a.label("L_nosp2")
        I(f"v_and_b32 v{t0}, 1, v{vN}\nv_lshl_add_u32 v{t0}, v{t2}, 1, v{t0}\nv_cvt_f32_u32 v{t0}, v{t0}\nv_mul_f32 v{t0}, {fhex(0.125)}, v{t0}")
        I(f"v_lshrrev_b32 v{t1}, 1, v{vN}\nv_and_b32 v{t3}, 1, v{t1}\nv_mul_u32_u24 v{t3}, 0x8000, v{t3}\nv_lshl_or_b32 v{t3}, v{t3}, 16, v{t3}\nv_cvt_f32_u32 v{t1}, v{t1}\nv_mul_f32 v{t1}, {fhex(0.125)}, v{t1}")
        I(f"v_mul_f32 v{T}, v{fq}, v{t0}\nv_add_f32 v{T}, v{T}, v{T}\nv_add_f32 v{T+1}, v{T}, v{t0}")
        for c in range(4):
            if c: I(f"v_add_f32 v{T}, v{T}, v{t1}\nv_add_f32 v{T+1}, v{T+1}, v{t1}")
            I(f"v_cos_f32 v{T+2}, v{T}\nv_sin_f32 v{T+3}, v{T}\nv_cos_f32 v{T+4}, v{T+1}\nv_sin_f32 v{T+5}, v{T+1}")
            I(f"v_cvt_pk_bf16_f32 v{EC+2*c}, v{T+2}, -v{T+3}\nv_cvt_pk_bf16_f32 v{EC+2*c+1}, v{T+4}, -v{T+5}")
        for i in range(8): I(f"v_xor_b32 v{EC+8+i}, v{t3}, v{EC+i}")
    poll("x1", [f"buffer_load_dwordx4 {vr(IN,4)}, v{vX1L}, {sr(S_WS,4)}, s{sA} offen sc1", f"buffer_load_dwordx4 {vr(IN+4,4)}, v{vX1L}, {sr(S_WS,4)}, s63 offen sc1"], fill1)
    stamp("x1ok")
    V.put(WRAW, 8); V.put(WSP, 8); V.put(vWG); V.put(vX1L); V.put(PF, 2)
    for h2 in range(2):
        for e in range(2):
            I(f"ds_write2st64_b32 v{vBW}, v{IN+4*h2+2*e}, v{IN+4*h2+2*e+1} offset0:{2*h2+8*e} offset1:{2*h2+8*e+4}")
    a.wait_lg0(); I("s_barrier")
    I(f"ds_read_b128 {vr(IN,4)}, v{vBR}\nds_read_b128 {vr(IN+4,4)}, v{vBR} offset:1024")
    I(f"v_and_b32 v{vFL}, 31, v{vL}\nv_lshlrev_b32 v{vFL}, 7, v{vFL}\ns_lshl_b32 s{sT}, s{sG}, 12\ns_add_u32 s{sT}, s{sT}, s{sA+5}")
    I(f"buffer_load_dword v{FV}, v{vFL}, {sr(S_WS,4)}, s{sT} offen offset:8 sc1")
    w1_point('x1ok')
    DB = V.get(16, 4)
    def bstage(st, op, data_is_a):
        for col in range(2):
            for ri in range(2):
                x, m = vr(IN+4*col, 4), vr(MB+8*st+4*ri, 4)
                I(f"{op} {vr(DB+8*col+4*ri,4)}, {x if data_is_a else m}, {m if data_is_a else x}, 0")
    def cmul(tw, cvt):
        for col in range(2):
            c, s = tw(col); R, J = DB + 8*col, DB + 8*col + 4; o = T + 8*col
            for e in (0, 2): I(f"v_pk_mul_f32 {vr(o+e,2)}, {vr(R+e,2)}, {vr(c+e,2)}\nv_pk_mul_f32 {vr(o+4+e,2)}, {vr(R+e,2)}, {vr(s+e,2)}")
            for e in (0, 2): I(f"v_pk_fma_f32 {vr(o+e,2)}, {vr(J+e,2)}, {vr(s+e,2)}, {vr(o+e,2)} neg_lo:[1,0,0] neg_hi:[1,0,0]\nv_pk_fma_f32 {vr(o+4+e,2)}, {vr(J+e,2)}, {vr(c+e,2)}, {vr(o+4+e,2)}")
        for col in range(2):
            o = T + 8*col
            for i in range(4): I(f"{cvt} v{IN+4*col+i}, v{o+i}, v{o+4+i}")
    bstage(0, "v_mfma_f32_16x16x32_f16", True); cmul(lambda c: (TW1, TW1+4), "v_cvt_pk_f16_f32")
    bstage(1, "v_mfma_f32_16x16x32_f16", False); cmul(lambda c: (WF+8*c, WF+8*c+4), "v_cvt_pk_bf16_f32")
    bstage(2, "v_mfma_f32_16x16x32_bf16", True); cmul(lambda c: (TW2, TW2+4), "v_cvt_pk_bf16_f32")
    bstage(3, "v_mfma_f32_16x16x32_bf16", True)
    for ri in range(2):
        for i in range(4): I(f"v_cvt_pk_bf16_f32 v{T+4*ri+i}, v{DB+4*ri+i}, v{DB+8+4*ri+i}")
        for i in range(4): I(f"v_min_u32 v{T+4*ri+i}, -2, v{T+4*ri+i}")
        I(f"ds_write_b128 v{vOW}, {vr(T+4*ri,4)} offset:{4160*ri}")
    a.wait_lg0(); I("s_barrier")
    for h2 in range(2):
        for e in range(2):
            I(f"ds_read2st64_b32 {vr(DB+4*h2+2*e,2)}, v{vOR} offset0:{2*h2+8*e} offset1:{2*h2+8*e+4}")
    for h2 in range(2):
        I(f"buffer_store_dwordx4 {vr(DB+4*h2,4)}, v{vX2S}, {sr(S_WS,4)}, s{sA+1} offen offset:{256*h2} sc1")
    stamp("Bdone")
    V.put(MB, 32); V.put(TW1, 8); V.put(TW2, 8); V.put(WF, 16); V.put(vBW); V.put(vBR); V.put(vOW); V.put(vOR); V.put(vX2S)
    I(f"s_or_b32 s{sT}, s2, s{sW}\ns_cmp_lg_u32 s{sT}, 0\ns_cbranch_scc1 L_nogen")
    I(f"s_mov_b32 s{sT}, {GEN}\ns_mov_b64 exec, 1")
    I(f"buffer_store_dwordx2 {vr(FLG,2)}, off, {sr(S_WS,4)}, s{sT} sc1", track=False)
    I("s_mov_b64 exec, -1")
    a.label("L_nogen")
    KF, A0 = V.get(4, 1), V.get(8, 1); FIX = V.get()
    I(f"v_lshl_add_u32 v{t0}, v{vR}, 3, v{vC}\nv_cvt_f32_u32 v{t0}, v{t0}")
    I(f"v_lshlrev_b32 v{t1}, 6, v{vQ}\nv_lshl_add_u32 v{t1}, v{t2}, 1, v{t1}\nv_cmp_eq_u32 vcc, 0, v{t1}\nv_cvt_f32_u32 v{t1}, v{t1}")
    I(f"v_mov_b32 v{FIX}, 0.5\nv_and_b32 v{t3}, 0x80000000, v{vSGN_ODD}\nv_xor_b32 v{FIX}, v{t3}, v{FIX}\nv_cndmask_b32 v{FIX}, 1.0, v{FIX}, vcc")
    for t in range(4):
        I(f"v_add_f32 v{t3}, {fhex(32.0*(t>>1)+4.0*(t&1))}, v{t0}\nv_mul_f32 v{t3}, {fhex(1/512)}, v{t3}\nv_mul_f32 v{KF+t}, {fhex(8.0)}, v{t3}")
        I(f"v_mul_f32 v{A0+2*t}, v{t3}, v{t1}\nv_add_f32 v{A0+2*t+1}, v{A0+2*t}, v{t3}")
    def ctab(half):
        chs = [(t, cb) for t in (2*half, 2*half+1) for cb in range(2)]
        recur(4, [KF+t for t, cb in chs], [A0+2*t+cb for t, cb in chs], 8, 2.0**-11,
              lambda ch, jp: (GC + 16*chs[ch][0] + 8*chs[ch][1] + jp, GC + 16*chs[ch][0] + 8*chs[ch][1] + 4 + jp), "v_cvt_pk_bf16_f32",
              fix=lambda ch: FIX if chs[ch][1] == 0 else None)
    ctab(0)
    vX2L, vCW, vCR, vHS = V.get(), V.get(), V.get(), V.get()
    I(f"v_lshrrev_b32 v{t0}, 1, v{vN}\nv_lshlrev_b32 v{t0}, 4, v{t0}\nv_lshl_add_u32 v{t0}, v{t2}, 2, v{t0}\nv_add_u32 v{t0}, v{t0}, v{vQ}\nv_and_b32 v{t1}, 1, v{vN}\nv_lshlrev_b32 v{t1}, 4, v{t1}\nv_lshl_add_u32 v{vX2L}, v{t0}, 14, v{t1}")
    I(f"s_lshl_b32 s{sT}, s{sPOS}, 5\ns_add_u32 s{sA}, s{sT}, {X2}\ns_add_u32 s63, s{sA}, 8192")
    a.wait_vm0()
    stamp("ack2")
    def fill2():
        I(f"v_cmp_ne_u32 vcc, s{sXCC}, v{FV}\ns_cmp_eq_u64 vcc, 0\ns_cselect_b32 s{sMODE}, {0 if cfg.get('force_slow') else 1}, 0")
        ctab(1)
        I(f"v_lshlrev_b32 v{t0}, 4, v{vL}\nv_add_u32 v{vCR}, {SCR_C}, v{t0}\nv_lshl_add_u32 v{vCW}, v{t2}, 12, v{vCR}")
        I(f"v_lshrrev_b32 v{t0}, 1, v{vN}\nv_lshlrev_b32 v{t0}, 11, v{t0}\nv_lshl_add_u32 v{t0}, v{vQ}, 8, v{t0}\nv_lshl_add_u32 v{t0}, v{t2}, 5, v{t0}\nv_and_b32 v{t1}, 1, v{vN}\nv_lshl_add_u32 v{vHS}, v{t1}, 4, v{t0}")
        I(f"v_xor_b32 v{vSGN_ODD}, 0x80008000, v{vSGN_ODD}")
        I(f"s_mov_b32 s60, 0x05040100\ns_mov_b32 s61, 0x07060302")
    poll("x2", [f"buffer_load_dwordx4 {vr(IN,4)}, v{vX2L}, {sr(S_WS,4)}, s{sA} offen sc1", f"buffer_load_dwordx4 {vr(IN+4,4)}, v{vX2L}, {sr(S_WS,4)}, s63 offen sc1"], fill2)
    stamp("x2ok")
    V.put(KF, 4); V.put(A0, 8); V.put(FIX); V.put(vX2L); V.put(fq); V.put(fn)
    FA = DB
    for cb in range(2):
        for e in range(4): I(f"v_perm_b32 v{FA+4*cb+e}, v{IN+2*e+1}, v{IN+2*e}, s{60+cb}")
    D1 = V.get(32, 4)
    k = 0
    for t in range(4):
        for cb in range(2):
            I(f"v_mfma_f32_16x16x32_bf16 {vr(D1+8*t+4*cb,4)}, {vr(FA+4*cb,4)}, {vr(GC+16*t+8*cb,4)}, 0")
            I(f"v_xor_b32_dpp v{FA+8+k}, v{FA+k}, v{vSGN_ODD} quad_perm:[1,0,3,2] row_mask:0xf bank_mask:0xf"); k += 1
    pend = []
    for t in range(4):
        for cb in range(2):
            I(f"v_mfma_f32_16x16x32_bf16 {vr(D1+8*t+4*cb,4)}, {vr(FA+8+4*cb,4)}, {vr(GC+16*t+8*cb+4,4)}, {vr(D1+8*t+4*cb,4)}")
    for t in range(4):
        for e in range(4): I(f"v_cvt_pk_bf16_f32 v{T+4*t+e}, v{D1+8*t+2*e}, v{D1+8*t+2*e+1}")
        I(f"ds_write_b128 v{vCW}, {vr(T+4*t,4)} offset:{1024*t}")
    a.wait_lg0(); I("s_barrier")
    ZF = GC
    for ks in range(4):
        for t in range(4): I(f"ds_read_b128 {vr(ZF+16*ks+4*t,4)}, v{vCR} offset:{4096*ks+1024*t}")
    w1_point('x2ok')
    for ks in range(4):
        for t in range(4):
            I(f"v_mfma_f32_16x16x32_bf16 {vr(HX+4*t,4)}, {vr(ZF+16*ks+4*t,4)}, {vr(EC+4*ks,4)}, {vr(HX+4*t,4)}")
    I(f"s_lshl_b32 s{sT}, s{sG}, 18\ns_lshr_b32 s58, s{sM}, 1\ns_lshl_b32 s58, s58, 14\ns_add_u32 s{sT}, s{sT}, s58\ns_and_b32 s58, s{sM}, 1\ns_lshl_b32 s58, s58, 7\ns_add_u32 s{sT}, s{sT}, s58")
    I(f"s_add_u32 s{sA}, s{sT}, {HN}\ns_add_u32 s{sA+1}, s{sT}, {HR}")
    R_, B_ = stats(HX, True, BETA)
    for i in range(8):
        I(f"v_pk_fma_f32 {vr(D1+2*i,2)}, {vr(HX+2*i,2)}, {vr(R_,2)}, {vr(B_,2)} op_sel_hi:[1,0,0] neg_lo:[0,0,1] neg_hi:[0,0,1]")
    for i in range(8): I(f"v_cvt_pk_bf16_f32 v{D1+16+i}, v{D1+2*i}, v{D1+2*i+1}")
    modal([f"buffer_store_dwordx4 {vr(D1+16+4*h,4)}, v{vHS}, {sr(S_WS,4)}, s{sA} offen offset:{1024*h}" for h in range(2)])
    for i in range(8): I(f"v_cvt_pk_bf16_f32 v{D1+24+i}, v{HX+2*i}, v{HX+2*i+1}")
    modal([f"buffer_store_dwordx4 {vr(D1+24+4*h,4)}, v{vHS}, {sr(S_WS,4)}, s{sA+1} offen offset:{1024*h}" for h in range(2)])
    stamp("Cdone")
    w1_point('cdone')
    V.put(EC, 16); V.put(GC, 64); V.put(HX, 16); V.put(DB, 16); V.put(IN, 8); V.put(vCW); V.put(vCR); V.put(vHS); V.put(vSGN_ODD); V.put(T, 16)
    srd(S_WD, 16, 1792*1024); srd(S_OUT, 18, 2048*1024)
    I(f"v_lshlrev_b32 v{vL16}, 4, v{vL}")
    I(f"v_lshlrev_b32 v{t0}, 2, v{vQ}\nv_add_u32 v{t0}, v{t0}, v{vR}\nv_mul_u32_u24 v{t0}, 224, v{t0}\nv_lshl_add_u32 v{vG1}, v{vC}, 3, v{t0}\nv_add_u32 v{vG1+1}, {IMG_U}, v{vG1}")
    I(f"v_cmp_gt_u32 vcc, 2, v{vC}\nv_add_u32 v{t0}, 96, v{vG1}\nv_add_u32 v{t1}, {IMG_U+96-16+112}, v{vG1}\nv_cndmask_b32 v{vG1+2}, v{t1}, v{t0}, vcc")
    I(f"v_add_u32 v{t0}, {96+112}, v{vG1}\nv_add_u32 v{t1}, {IMG_U+96-16}, v{vG1}\nv_cndmask_b32 v{vG1+3}, v{t1}, v{t0}, vcc")
    I(f"v_lshlrev_b32 v{t0}, 2, v{vQ}\nv_add_u32 v{t0}, v{t0}, v{vR}\nv_bfe_u32 v{t1}, v{t0}, 1, 2\nv_lshlrev_b32 v{t0}, 7, v{t0}\nv_lshl_add_u32 v{t0}, v{t1}, 5, v{t0}\nv_lshl_add_u32 v{t0}, v{vC}, 3, v{t0}")
    I(f"v_mul_u32_u24 v{t1}, 12288, v{t2}\nv_add_u32 v{t1}, {STG}, v{t1}\nv_add_u32 v{vS2}, v{t0}, v{t1}")
    for ct in range(1, 4): I(f"v_xor_b32 v{vS2+ct}, {32*ct}, v{vS2}")
    I(f"v_lshrrev_b32 v{t0}, 3, v{vL}\nv_and_b32 v{t1}, 6, v{t0}\nv_and_b32 v{t3}, 7, v{vL}\nv_xor_b32 v{t1}, v{t1}, v{t3}\nv_lshlrev_b32 v{t1}, 4, v{t1}\nv_lshl_add_u32 v{vD2}, v{t0}, 10, v{t1}")
    I(f"v_bfe_u32 v{t3}, v{t0}, 1, 1\nv_mul_u32_u24 v{t3}, 56, v{t3}\nv_and_b32 v{t0}, 5, v{t0}\nv_add_u32 v{t0}, v{t0}, v{t3}\nv_lshl_add_u32 v{vD2+1}, v{t0}, 10, v{t1}")
    I(f"s_mul_i32 s62, s{sW}, {448*1024}\ns_and_b32 s58, s{sM}, 7\ns_lshl_b32 s58, s58, 7\ns_add_u32 s62, s62, s58\ns_mul_i32 s63, s{sW}, 12288\ns_add_u32 s63, s63, {STG}")
    I(f"s_lshl_b32 s{sT}, s{sPOS}, 5\ns_lshl_b32 s58, s{sW}, 3\ns_add_u32 s{sT}, s{sT}, s58\ns_add_u32 s{sT}, s{sT}, {FL3}")
    I(f"v_lshrrev_b32 v{vFL}, 4, v{vFL}")
    I(f"s_lshl_b32 s58, s{sG}, 10\ns_lshl_b32 s59, s{sW}, 8\ns_add_u32 s58, s58, s59\ns_add_u32 s{sA+5}, s58, {FL3}")
    I(f"s_lshl_b32 s58, s{sG}, 18\ns_lshl_b32 s59, s{sW}, 16\ns_add_u32 s58, s58, s59\ns_add_u32 s{sA}, s58, {HN}")
    for rt in range(1, 4): I(f"s_add_u32 s{sA+rt}, s{sA}, {16384*rt}")
    a.wait_vm0()
    stamp("ack3")
    I("s_mov_b64 exec, 1")
    modal([f"buffer_store_dwordx2 {vr(FLG,2)}, off, {sr(S_WS,4)}, s{sT}"])
    I("s_mov_b64 exec, -1")
    V.put(D1, 32); V.put(vW1, 7)
    def flagpoll(name, soff, pre=None):
        a.label(f"L_{name}")
        I(f"buffer_load_dwordx2 {vr(FV,2)}, v{vFL}, {sr(S_WS,4)}, {soff} offen sc1")
        a.wait_vm0(True)
        I(f"v_cmp_ne_u64 vcc, s[{sTAG}:{sTAG+1}], {vr(FV,2)}\ns_cbranch_vccz L_{name}ok")
        spin_check()
        I(f"s_branch L_{name}")
        a.label(f"L_{name}ok")
    flagpoll("f3", f"s{sA+5}")
    stamp("f3ok")
    ACC = V.get(112, 4); DEPTH = cfg.get('depth', 6); ACT = V.get(16*DEPTH, 4); WR_ = V.get(16, 4)
    def act_load(ks, rt):
        t = f"buffer_load_dwordx4 {vr(ACT+16*(ks%DEPTH)+4*rt,4)}, v{vL16}, {sr(S_WS,4)}, s{sA+rt} offen offset:{1024*(ks%4)} sc1"
        if ks % 4 == 3: t += f"\ns_add_u32 s{sA+rt}, s{sA+rt}, 4096"
        return t
    for ks in range(DEPTH-1):
        for rt in range(4): I(act_load(ks, rt))
    I("s_barrier")
    def w_read(n, hh):
        ks, j = divmod(n, 7)
        d = vr(WR_+4*(n%4)+2*hh, 2)
        if j < 3: return f"ds_read_b64_tr_b16 {d}, v{vG1} offset:{ks*3584+hh*112+j*32}"
        if j < 6: return f"ds_read_b64_tr_b16 {d}, v{vG1+1} offset:{ks*3584+(1-hh)*112+(j-3)*32}"
        return f"ds_read_b64_tr_b16 {d}, v{vG1+2+hh} offset:{ks*3584}"
    def w2_dma(k2, ii):
        hh, qq = ii >> 1, ii & 1
        if k2 < 8: fr, pat = 56*k2 + 8*ii, 0
        elif k2 < 12: fr, pat = 56*(2*(k2-8) + hh) + 32 + 8*qq, 0
        else: fr, pat = 56*(4*(k2-12) + 2*hh) + 48 + 2*qq, 1
        return (f"s_add_u32 s61, s62, {fr*1024}\ns_add_u32 m0, s63, {(k2%3)*4096+ii*1024}", f"buffer_load_dwordx4 v{vD2+pat}, {sr(S_WD,4)}, s61 offen lds")
    def w2_read(k2, ct, hh):
        return f"ds_read_b64_tr_b16 {ar(16*k2+4*ct+2*hh,2)}, v{vS2+ct} offset:{(k2%3)*4096+hh*2048}"
    LAG = cfg.get('lag', 3)
    w2_issue = {}; w2_rd = {}
    for k2 in range(14):
        w2_issue[k2] = (k2//3)*(LAG+1) + (k2 % 3)
        w2_rd[k2] = w2_issue[k2] + LAG
    w2tok = {}; w2rdtok = {}
    for n in range(3):
        for hh in range(2): I(w_read(n, hh))
    NM = 16*28
    for ks in range(16):
        fill = {i: [] for i in range(28)}
        for j in range(7):
            n = ks*7 + j + 3
            if n < 112:
                fill[4*j].append(('v', w_read(n, 0))); fill[4*j+1].append(('v', w_read(n, 1)))
        if ks + DEPTH - 1 < 16:
            for rt in range(4): fill[2+4*rt].append(('v', act_load(ks+DEPTH-1, rt)))
        for k2 in range(14):
            if w2_rd[k2] == ks:
                fill[0].insert(0, ('wt', k2))
                slots = [0, 1, 4, 5, 8, 9, 12, 13]
                for x in range(8): fill[slots[x]].append(('r2', (k2, w2_read(k2, x >> 1, x & 1))))
            if w2_issue[k2] == ks:
                for ii in range(4): fill[16+2*ii + (ii > 0)*0].append(('dma', (k2, ii)))
        for i in range(28):
            j, rt = divmod(i, 4); n = ks*7 + j
            d = vr(ACC+16*j+4*rt, 4)
            I(f"v_mfma_f32_16x16x32_bf16 {d}, {vr(WR_+4*(n%4),4)}, {vr(ACT+16*(ks%DEPTH)+4*rt,4)}, {d if ks else 0}")
            if i < 27:
                j2, rt2 = divmod(i+1, 4); a.need(vr(WR_+4*((ks*7+j2)%4),4) + " " + vr(ACT+16*(ks%DEPTH)+4*rt2,4))
            elif ks < 15: a.need(vr(WR_+4*((ks*7+7)%4),4) + " " + vr(ACT+16*((ks+1)%DEPTH),4))
            for kind, x in fill[i]:
                if kind == 'v': I(x)
                elif kind == 'wt': a.wait_tok(w2tok[x])
                elif kind == 'r2': w2rdtok[x[0]] = I(x[1])
                elif kind == 'dma':
                    if x[1] == 0 and x[0] >= 3: a.wait_tok(w2rdtok[x[0]-3])
                    s, v = w2_dma(*x); I(s); w2tok[x[0]] = I(v)
    stamp("G1done")
    I("s_barrier")
    I(f"s_lshl_b32 s58, s{sG}, 2\ns_add_u32 s58, s58, s{sW}\ns_lshl_b32 s58, s58, 5\ns_add_u32 s58, s58, s{sM}\ns_mul_i32 s{sA}, s58, 7168\ns_add_u32 s{sA}, s{sA}, {HH}\ns_add_u32 s{sA+1}, s{sA}, 4096")
    I(f"s_lshl_b32 s58, s58, 3\ns_add_u32 s{sA+2}, s58, {FL4}")
    I(f"s_lshr_b32 s58, s{sPOS}, 3\ns_lshl_b32 s58, s58, 5\ns_lshl_b32 s59, s{sW}, 3\ns_add_u32 s58, s58, s59\ns_mul_i32 s{sA+3}, s58, 7168\ns_add_u32 s{sA+3}, s{sA+3}, {HH}")
    I(f"s_lshl_b32 s58, s58, 3\ns_add_u32 s{sA+4}, s58, {FL4}\ns_add_u32 s{sA+5}, s{sA+4}, 0x2000\ns_add_u32 s{sT}, s{sA+2}, 0x2000")
    I(f"v_and_b32 v{vFL}, 56, v{vFL}")
    I(f"s_mov_b32 s58, {fhex(KAPPA)}\ns_mov_b32 s59, s58")
    GT = WR_
    HP = ACT
    def gelu(G, U, n, dst, tb):
        s = GT + tb
        for e in range(0, n, 2): I(f"v_pk_fma_f32 {vr(s+e,2)}, {vr(G+e,2)}, {vr(G+e,2)}, s[58:59]")
        for e in range(0, n, 2): I(f"v_pk_mul_f32 {vr(s+e,2)}, {vr(s+e,2)}, {vr(G+e,2)}")
        for e in range(n): I(f"v_exp_f32 v{s+e}, -v{s+e}")
        for e in range(0, n, 2): I(f"v_pk_mul_f32 {vr(G+e,2)}, {vr(G+e,2)}, {vr(U+e,2)}")
        for e in range(0, n, 2): I(f"v_pk_add_f32 {vr(s+e,2)}, {vr(s+e,2)}, 1.0 op_sel_hi:[1,0]")
        for e in range(n): I(f"v_rcp_f32 v{s+e}, v{s+e}")
        for e in range(0, n, 2): I(f"v_pk_mul_f32 {vr(G+e,2)}, {vr(G+e,2)}, {vr(s+e,2)}")
        for e in range(0, n, 2): I(f"v_cvt_pk_bf16_f32 v{dst+e//2}, v{G+e}, v{G+e+1}")
    step = [16]
    def w2_tail_step():
        ks = step[0]; step[0] += 1
        for k2 in range(14):
            if w2_rd[k2] == ks:
                a.wait_tok(w2tok[k2])
                for x in range(8): w2rdtok[k2] = I(w2_read(k2, x >> 1, x & 1))
        for k2 in range(14):
            if w2_issue[k2] == ks:
                a.wait_tok(w2rdtok[k2-3])
                for ii in range(4):
                    s, v = w2_dma(k2, ii); I(s); w2tok[k2] = I(v)
    def hstore(slot, r):
        return modal([f"buffer_store_dwordx4 {vr(r,4)}, v{vL16}, {sr(S_WS,4)}, s{sA+slot//4} offen offset:{1024*(slot%4)}"])
    for rt in range(4):
        h = HP + 4*(rt % 2)
        gelu(ACC+4*rt, ACC+48+4*rt, 4, h, 0); gelu(ACC+16+4*rt, ACC+64+4*rt, 4, h+2, 4)
        tk1 = hstore(rt, h)
        if rt % 2 == 0: w2_tail_step()
    for rp in range(2):
        h = HP + 4*rp
        gelu(ACC+32+8*rp, ACC+80+8*rp, 4, h, 0); gelu(ACC+36+8*rp, ACC+84+8*rp, 4, h+2, 4)
        hstore(4+rp, h)
    w2_tail_step()
    a.wait_tok(tk1)
    I("s_mov_b64 exec, 1")
    modal([f"buffer_store_dwordx2 {vr(FLG,2)}, off, {sr(S_WS,4)}, s{sA+2}"])
    I("s_mov_b64 exec, -1")
    for rt in range(4):
        m = ACC + 96 + 4*rt
        I(f"v_permlane32_swap_b32 v{m}, v{m+2}\nv_permlane32_swap_b32 v{m+1}, v{m+3}")
    for rt in range(4):
        m = ACC + 96 + 4*rt
        gelu(m, m+2, 2, HP+rt, 2*rt)
    hstore(6, HP)
    stamp("gelu")
    flagpoll("f4a", f"s{sA+4}")
    I("s_mov_b64 exec, 1")
    modal([f"buffer_store_dwordx2 {vr(FLG,2)}, off, {sr(S_WS,4)}, s{sT}"])
    I("s_mov_b64 exec, -1")
    stamp("f4a")
    V.put(ACC, 112); V.put(ACT, 16*DEPTH); V.put(WR_, 16)
    AC2 = V.get(64, 4)
    HF = V.get(16*8, 4)
    RES = V.get(8, 4)
    def h_load(k2, x):
        if k2 < 8: p, slot = k2, x
        elif k2 < 12: p, slot = 2*(k2-8) + (x & 1), 4 + (x >> 1)
        else: p, slot = 4*(k2-12) + x, 6
        off = p*7168 + slot*1024
        return f"s_add_u32 s60, s{sA+3}, {off & ~4095}\nbuffer_load_dwordx4 {vr(HF+16*(k2%8)+4*x,4)}, v{vL16}, {sr(S_WS,4)}, s60 offen offset:{off & 4095} sc1"
    for k2 in range(8):
        for x in range(4): I(h_load(k2, x))
    while step[0] <= max(w2_rd.values()): w2_tail_step()
    def mm(k2, rt, ct):
        d = vr(AC2+16*rt+4*ct, 4)
        I(f"v_mfma_f32_16x16x32_bf16 {d}, {ar(16*k2+4*ct,4)}, {vr(HF+16*(k2%8)+4*rt,4)}, {d if k2 else 0}")
    for k2 in range(2):
        for rt in range(4):
            for ct in range(4): mm(k2, rt, ct)
    flagpoll("f4b", f"s{sA+5}")
    vO, vRS, vPW, vPR = V.get(), V.get(), V.get(4, 1), V.get(2, 1)
    late = [h_load(k2, x) for k2 in range(8, 14) for x in range(4)]
    misc = [f"v_lshrrev_b32 v{t0}, 3, v{vL}", f"v_and_b32 v{t1}, 7, v{vL}", f"v_lshlrev_b32 v{t3}, 4, v{t1}", f"v_lshl_add_u32 v{vO}, v{t0}, 18, v{t3}",
            f"v_lshlrev_b32 v{t3}, 4, v{t0}", f"v_lshl_add_u32 v{vRS}, v{t1}, 8, v{t3}",
            f"v_lshlrev_b32 v{t1}, 1, v{t1}", f"v_xor_b32 v{t1}, v{t1}, v{t0}", f"v_lshl_add_u32 v{t0}, v{t2}, 4, v{t0}", f"v_lshlrev_b32 v{t0}, 8, v{t0}", f"v_lshl_add_u32 v{vPR}, v{t1}, 4, v{t0}", f"v_xor_b32 v{vPR+1}, 16, v{vPR}",
            f"v_and_b32 v{t0}, 7, v{vN}", f"v_xor_b32 v{t0}, v{t0}, v{vQ}", f"v_lshlrev_b32 v{t0}, 4, v{t0}", f"v_lshl_add_u32 v{t0}, v{vN}, 8, v{t0}", f"v_lshl_add_u32 v{vPW}, v{t2}, 14, v{t0}",
            f"v_xor_b32 v{vPW+1}, 64, v{vPW}", f"v_xor_b32 v{vPW+2}, 0x80, v{vPW}", f"v_xor_b32 v{vPW+3}, 0xc0, v{vPW}"]
    I(f"s_lshr_b32 s58, s{sPOS}, 3\ns_lshl_b32 s58, s58, 2\ns_add_u32 s58, s58, s{sW}\ns_and_b32 s59, s{sM}, 7")
    I(f"s_lshl_b32 s{sA}, s58, 14\ns_lshl_b32 s61, s59, 11\ns_add_u32 s{sA}, s{sA}, s61\ns_add_u32 s{sA}, s{sA}, {HR}")
    I(f"s_lshl_b32 s{sA+1}, s58, 11\ns_lshl_b32 s61, s59, 7\ns_add_u32 s{sA+1}, s{sA+1}, s61")
    for k2 in range(2, 8):
        for rt in range(4):
            for ct in range(4):
                mm(k2, rt, ct)
                if ct == 0: I(late.pop(0))
                elif misc: I(misc.pop(0))
    for p in range(2): I(f"buffer_load_dwordx4 {vr(RES+4*p,4)}, v{vRS}, {sr(S_WS,4)}, s{sA} offen offset:{128*p} sc1")
    for k2 in range(8, 12):
        b = HF + 16*(k2 % 8)
        for o in (0, 8): I(f"v_swap_b32 v{b+o+2}, v{b+o+4}\nv_swap_b32 v{b+o+3}, v{b+o+5}")
    for k2 in range(12, 14):
        b = HF + 16*(k2 % 8)
        for x in range(4):
            for y in range(x+1, 4): I(f"v_swap_b32 v{b+4*x+y}, v{b+4*y+x}")
    wr = []
    for rt in range(4):
        n = 0
        for k2 in range(8, 14):
            for ct in range(4):
                mm(k2, rt, ct); n += 1
                if wr and n >= 6 and n % 4 == 2: I(wr.pop(0))
        wr = [f"ds_write_b128 v{vPW+ct}, {vr(AC2+16*rt+4*ct,4)} offset:{4096*rt}" for ct in range(4)]
    for t in wr: I(t)
    stamp("G2done")
    a.wait_lg0(); I("s_barrier")
    PR = HF
    for p in range(2):
        for e in range(2):
            for j in range(4): I(f"ds_read_b128 {vr(PR+32*p+16*e+4*j,4)}, v{vPR+e} offset:{16384*j+2048*p}")
    RF = AC2
    unpack(RF, RES, 8)
    I(f"s_mov_b32 s58, {fhex(1/(BETA*BETA))}\ns_mov_b32 s59, s58")
    for p in range(2):
        for e in range(2):
            b = PR + 32*p + 16*e
            for o in (0, 2): I(f"v_pk_add_f32 {vr(b+o,2)}, {vr(b+o,2)}, {vr(b+4+o,2)}\nv_pk_add_f32 {vr(b+8+o,2)}, {vr(b+8+o,2)}, {vr(b+12+o,2)}")
            for o in (0, 2): I(f"v_pk_add_f32 {vr(b+o,2)}, {vr(b+o,2)}, {vr(b+8+o,2)}")
            for o in (0, 2): I(f"v_pk_fma_f32 {vr(b+o,2)}, {vr(b+o,2)}, s[58:59], {vr(RF+8*p+4*e+o,2)}")
            for o in (0, 2): I(f"v_cvt_pk_bf16_f32 v{RES+4*p+2*e+o//2}, v{b+o}, v{b+o+1}")
        I(f"buffer_store_dwordx4 {vr(RES+4*p,4)}, v{vO}, {sr(S_OUT,4)}, s{sA+1} offen offset:{1024*p} {cfg.get('outflag','')}")
    if dbg:
        a.wait_vm0(); stamp("end"); a.wait_lg0()
        I(f"s_lshl_b32 s58, s2, 2\ns_add_u32 s58, s58, s{sW}\ns_lshl_b32 s58, s58, 7\ns_add_u32 s58, s58, {STAMP}\ns_mov_b64 exec, 1")
        for i in range(nst[0]):
            I(f"v_mov_b32 v4, s{STS[i]}\nbuffer_store_dword v4, off, {sr(S_WS,4)}, s58 offset:{4*i}")
        I(f"v_mov_b32 v4, s{sSPIN}\nbuffer_store_dword v4, off, {sr(S_WS,4)}, s58 offset:120\nv_mov_b32 v4, s{sMODE}\nbuffer_store_dword v4, off, {sr(S_WS,4)}, s58 offset:124")
    a.label("L_end")
    I("s_endpgm")
    for n, lines in cfg.get('_tail', []):
        a.label(f"L_slow{n}")
        for t in lines: a.raw("  " + t + " sc1")
        a.raw("  s_nop 1")
        a.raw(f"  s_branch L_back{n}")
    a.raw(".p2align 8\nL_pad:\n.fill 8192, 4, 0xbf810000" if cfg.get('pad', True) else "")
    a.raw(f'''.section .rodata,"a"
.p2align 6
.amdhsa_kernel {NAME}_kernel
  .amdhsa_next_free_vgpr 512
  .amdhsa_next_free_sgpr 102
  .amdhsa_accum_offset 256
  .amdhsa_group_segment_fixed_size 0
  .amdhsa_kernarg_size 80
  .amdhsa_user_sgpr_count 2
  .amdhsa_user_sgpr_kernarg_segment_ptr 1
  .amdhsa_system_sgpr_workgroup_id_x 1
.end_amdhsa_kernel''')
    return a

if __name__ == "__main__":
    import json
    out = sys.argv[1]
    cfg = json.loads(sys.argv[2]) if len(sys.argv) > 2 else {}
    a = gen(cfg)
    hdr = ""
    open(out, "w").write(hdr + a.text())
    json.dump(cfg.get('stamp_names', []), open(out + ".stamps", "w"))
    print("instrs", sum(a.count.values()), "nops", a.count.get('s_nop', 0), "waits", a.count.get('s_waitcnt', 0))
```

```python
import sys, math
from asmlib import *
NAME = "sequential_preLN__spectral_gfnet__glu_gated_geglu__prompt"
BETA = struct.unpack('<f', struct.pack('<f', (0.044715 * 2 * math.sqrt(2/math.pi) * math.log2(math.e)) ** (1/3)))[0]
KAPPA = 2 * math.sqrt(2/math.pi) * math.log2(math.e) / BETA
X1, X2, HN, HR, HH = 0, 0x200000, 0x400000, 0x600000, 0x800000
FL0, FL3, FL4, GEN, STAMP = 0x1000000, 0x1010000, 0x1020000, 0x1030000, 0x1040000
WS_SIZE = 0x1100000
IMG_G, IMG_U, STG = 0, 57344, 114688
SCR_A, SCR_X, SCR_BI, SCR_BO, SCR_C = STG, STG + 8192, STG + 16384, STG + 16384 + 8448, STG
SPIN = 0x20000
S_WR, S_WI, S_W1, S_WD, S_WS, S_OUT = 24, 28, 32, 36, 40, 44
sW, sG, sM, sPOS, sTAG, sMODE, sSPIN, sXCC = 48, 49, 50, 51, 52, 54, 55, 56
sT = 57
sA = 64
STS = list(range(70, 102, 2)) + [10, 20, 4, 6, 8]

class Alloc:
    def __init__(self, lo, hi): self.free = list(range(lo, hi))
    def get(self, n=1, al=None):
        al = al or (2 if n > 1 else 1)
        fs = set(self.free)
        for b in self.free:
            if b % al == 0 and all((b + i) in fs for i in range(n)):
                for i in range(n): self.free.remove(b + i)
                return b
        raise Exception(f"out of vgprs ({n})")
    def put(self, b, n=1):
        for i in range(n):
            assert b + i not in self.free
            self.free.append(b + i)
        self.free.sort()

def gen(cfg):
    a = Asm(); I = a.I
    dbg = cfg.get('stamps', False)
    nst = [0]
    def stamp(name):
        if dbg and (name in cfg.get('extra', []) or (not name.startswith('_') and name not in cfg.get('skip', []))):
            I(f"s_memrealtime s[{STS[nst[0]]}:{STS[nst[0]]+1}]"); nst[0] += 1
            cfg.setdefault('stamp_names', []).append(name)
    V = Alloc(30, 256)
    vL, vN, vQ = 1, 2, 3
    t0, t1, t2, t3, FLG, FV, vFL, vL16, vG1, vS2, vD2, vR, vC = 4, 5, 6, 7, 8, 12, 16, 17, 18, 22, 26, 28, 29
    lab = [0]
    def srd(s, base, size):
        I(f"s_mov_b32 s{s}, s{base}\ns_mov_b32 s{s+1}, s{base+1}\ns_mov_b32 s{s+2}, {size}\ns_mov_b32 s{s+3}, 0x20000")
    def modal(lines):
        for t in lines: a.need(t)
        lab[0] += 1; n = lab[0]
        I(f"s_cmp_eq_u32 s{sMODE}, 0\ns_cbranch_scc1 L_slow{n}")
        tok = None
        for t in lines: tok = I(t)
        a.label(f"L_back{n}")
        cfg.setdefault('_tail', []).append((n, lines))
        return tok
    def spin_check():
        I(f"s_add_u32 s{sSPIN}, s{sSPIN}, 1\ns_cmp_ge_u32 s{sSPIN}, {SPIN}\ns_cbranch_scc1 L_end")

    a.raw(f"; @launch grid=(256,1,1) block=(256,1,1) lds=163840")
    a.raw('.amdgcn_target "amdgcn-amd-amdhsa--gfx950"\n.text')
    a.raw(f".globl {NAME}_kernel\n.p2align 8\n.type {NAME}_kernel,@function\n{NAME}_kernel:")
    I("s_cmp_ge_u32 s2, 256\ns_cbranch_scc0 L_go\ns_endpgm")
    a.label("L_go")
    I("s_load_dwordx16 s[4:19], s[0:1], 0\ns_load_dwordx4 s[20:23], s[0:1], 64")
    stamp("start")
    if cfg.get('padto'): I("s_memrealtime s[100:101]")
    I(f"s_and_b32 s{sG}, s2, 7\ns_lshr_b32 s{sM}, s2, 3\ns_lshl_b32 s{sPOS}, s{sG}, 5\ns_add_u32 s{sPOS}, s{sPOS}, s{sM}")
    XR = V.get(8, 4)
    I(f"v_lshrrev_b32 v{t0}, 5, v0\nv_and_b32 v{t1}, 31, v0\nv_lshlrev_b32 v{t0}, 18, v{t0}\nv_lshlrev_b32 v{t1}, 4, v{t1}\ns_lshl_b32 s{sT}, s{sPOS}, 10")
    I(f"v_add3_u32 v{t0}, v{t0}, v{t1}, s{sT}")
    I(f"v_and_b32 v{vL}, 63, v0\nv_lshrrev_b32 v{t2}, 6, v0\nv_and_b32 v{vN}, 15, v0\nv_bfe_u32 v{vQ}, v0, 4, 2\nv_readfirstlane_b32 s{sW}, v{t2}")
    I(f"global_load_dwordx4 {vr(XR,4)}, v{t0}, s[4:5]\nglobal_load_dwordx4 {vr(XR+4,4)}, v{t0}, s[4:5] offset:512")
    I(f"s_add_u32 s{sT+1}, s22, {GEN}\ns_addc_u32 s{sT+2}, s23, 0" .replace(f"s{sT+1}", "s58").replace(f"s{sT+2}", "s59"))
    I(f"s_load_dwordx2 s[{sTAG}:{sTAG+1}], s[58:59], 0")
    srd(S_WS, 22, WS_SIZE)
    I(f"s_mov_b32 s{sSPIN}, 0\ns_getreg_b32 s{sXCC}, hwreg(HW_REG_XCC_ID)\ns_and_b32 s{sXCC}, s{sXCC}, 15")
    vX1S, vX2S = V.get(), V.get()
    ONES = V.get(4, 4)
    for i in range(4): I(f"v_mov_b32 v{ONES+i}, -1")
    I(f"v_lshlrev_b32 v{t1}, 11, v{vQ}\nv_lshl_add_u32 v{t1}, v{vN}, 4, v{t1}\nv_lshl_add_u32 v{vX1S}, v{t2}, 8, v{t1}")
    I(f"v_bfe_u32 v{t1}, v0, 3, 4\nv_lshlrev_b32 v{t1}, 9, v{t1}\nv_lshrrev_b32 v{t3}, 7, v0\nv_lshl_add_u32 v{t1}, v{t3}, 7, v{t1}\nv_and_b32 v{t3}, 7, v0\nv_lshl_add_u32 v{vX2S}, v{t3}, 4, v{t1}")
    I(f"s_lshl_b32 s{sA}, s{sPOS}, 13\ns_add_u32 s{sA+1}, s{sA}, {X2}")
    I(f"buffer_store_dwordx4 {vr(ONES,4)}, v{vX1S}, {sr(S_WS,4)}, s{sA} offen sc1")
    I(f"buffer_store_dwordx4 {vr(ONES,4)}, v{vX1S}, {sr(S_WS,4)}, s{sA} offen offset:1024 sc1")
    I(f"buffer_store_dwordx4 {vr(ONES,4)}, v{vX2S}, {sr(S_WS,4)}, s{sA+1} offen sc1")
    tok_clr = I(f"buffer_store_dwordx4 {vr(ONES,4)}, v{vX2S}, {sr(S_WS,4)}, s{sA+1} offen offset:256 sc1")
    stamp('_clr')
    PF = V.get(2)
    I(f"s_getpc_b64 s[60:61]\nv_lshlrev_b32 v{t1}, 7, v0")
    I(f"global_load_dword v{PF}, v{t1}, s[60:61]")
    srd(S_WR, 6, 2048*514); srd(S_WI, 8, 2048*514)
    WRAW = V.get(8); WSP = V.get(8)
    vWG = V.get()
    def w_gather():
        I(f"v_mul_u32_u24 v{t1}, {8*514}, v{vN}\nv_mul_u32_u24 v{t3}, {512*514}, v{vQ}\nv_add_u32 v{vWG}, v{t1}, v{t3}")
        I(f"s_lshr_b32 s{sT}, s{sM}, 3\ns_lshl_b32 s{sT}, s{sT}, 2\ns_and_b32 s58, s{sM}, 7\ns_lshl_b32 s58, s58, 6\ns_add_u32 s{sT}, s{sT}, s58\ns_lshl_b32 s58, s{sW}, 4\ns_add_u32 s{sA+2}, s{sT}, s58")
        I(f"s_mul_i32 s58, s{sG}, 514\ns_add_u32 s{sT}, s{sA+2}, s58")
        for i in range(4):
            I(f"buffer_load_dword v{WRAW+i}, v{vWG}, {sr(S_WR,4)}, s{sT} offen\nbuffer_load_dword v{WRAW+4+i}, v{vWG}, {sr(S_WI,4)}, s{sT} offen")
            if i < 3: I(f"s_add_u32 s{sT}, s{sT}, {128*514}")
        I(f"s_cmp_lg_u32 s{sA+2}, 0\ns_cbranch_scc1 L_nosp")
        for i in range(4):
            I(f"buffer_load_ushort v{WSP+i}, v{vWG}, {sr(S_WR,4)}, s58 offen offset:512", track=False)
            I(f"buffer_load_ushort v{WSP+4+i}, v{vWG}, {sr(S_WI,4)}, s58 offen offset:512", track=False)
            I(f"s_add_u32 s58, s58, {128*514}")
        a.label("L_nosp")
    stamp('_pf')
    if cfg.get('wg_at', 'start') == 'start': w_gather()
    stamp('_gath')
    vW1 = V.get(7, 1)
    I(f"s_lshr_b32 s{sT}, s{sW}, 1\ns_cmp_eq_u32 s{sT}, 0\ns_cselect_b32 s{S_W1}, s12, s14\ns_cselect_b32 s{S_W1+1}, s13, s15\ns_mov_b32 s{S_W1+2}, {512*3584}\ns_mov_b32 s{S_W1+3}, 0x20000")
    for nn in range(7):
        I(f"v_add_u32 v{t0}, {64*nn}, v{vL}\nv_mul_u32_u24 v{t1}, 9363, v{t0}\nv_lshrrev_b32 v{t1}, 16, v{t1}")
        I(f"v_mul_u32_u24 v{t3}, 7, v{t1}\nv_sub_u32 v{t0}, v{t0}, v{t3}\nv_xor_b32 v{t1}, s{sT}, v{t1}")
        I(f"v_and_b32 v{t3}, 1, v{t1}\nv_lshlrev_b32 v{t3}, 2, v{t3}\nv_and_or_b32 v{t3}, v{t1}, 56, v{t3}\nv_bfe_u32 v{t1}, v{t1}, 1, 2\nv_add_u32 v{t1}, v{t1}, v{t3}")
        I(f"v_mul_u32_u24 v{t1}, 3584, v{t1}\nv_lshl_add_u32 v{vW1+nn}, v{t0}, 4, v{t1}")
    I(f"s_and_b32 s58, s{sW}, 1\ns_mul_i32 s59, s58, {64*3584}\ns_mul_i32 s{sA+3}, s{sM}, 112\ns_add_u32 s{sA+3}, s{sA+3}, s59")
    I(f"s_mul_i32 s58, s58, 7168\ns_mul_i32 s59, s{sT}, {IMG_U}\ns_add_u32 s{sA+4}, s58, s59")
    w1tok = []
    def w1_round():
        r = len(w1tok)
        for nn in range(7):
            I(f"s_add_u32 m0, s{sA+4}, {r*2*7168 + nn*1024}")
            tk = I(f"buffer_load_dwordx4 v{vW1+nn}, {sr(S_W1,4)}, s{sA+3} offen lds")
        I(f"s_add_u32 s{sA+3}, s{sA+3}, {2*64*3584}")
        w1tok.append(tk)
    W1AT = cfg.get('w1_at', ['start', 'xarr', 'x1ok', 'x2ok'])
    def w1_point(name):
        for p in W1AT:
            if p == name: w1_round()
    stamp('_w1a')
    w1_point('start')
    stamp('_w1b')
    EA = V.get(16, 4)
    GA = V.get(64, 4)
    fq, fn = V.get(), V.get()
    I(f"v_cvt_f32_u32 v{fq}, v{vQ}\nv_cvt_f32_u32 v{fn}, v{vN}")
    vSGN_ODD = V.get()
    I(f"v_and_b32 v{t0}, 1, v{vN}\nv_mul_u32_u24 v{t0}, 0x8000, v{t0}\nv_lshl_or_b32 v{vSGN_ODD}, v{t0}, 16, v{t0}")
    T = V.get(16, 4)
    I(f"v_lshrrev_b32 v{t0}, 1, v{vN}\nv_mul_u32_u24 v{t1}, v{t0}, v{vQ}\nv_and_b32 v{t3}, 1, v{vN}\nv_lshl_add_u32 v{t1}, v{t3}, 1, v{t1}\nv_cvt_f32_u32 v{t1}, v{t1}\nv_mul_f32 v{t1}, 0.125, v{t1}".replace("0.125", fhex(0.125)))
    I(f"v_and_b32 v{t0}, 1, v{t0}\nv_mul_u32_u24 v{t0}, 0x8000, v{t0}\nv_lshl_or_b32 v{t0}, v{t0}, 16, v{t0}")
    I(f"v_cvt_f32_u32 v{t3}, v{t2}\nv_mul_f32 v{t3}, {fhex(0.25)}, v{t3}")
    for cb in range(2):
        if cb: I(f"v_add_f32 v{t3}, {fhex(0.125)}, v{t3}")
        I(f"v_add_f32 v{T+1}, v{t1}, v{t3}\nv_add_f32 v{T+2}, v{T+1}, v{t3}\nv_add_f32 v{T+3}, v{T+2}, v{t3}")
        I(f"v_cos_f32 v{T}, v{t1}\nv_cos_f32 v{T+1}, v{T+1}\nv_cos_f32 v{T+2}, v{T+2}\nv_cos_f32 v{T+3}, v{T+3}")
        e = EA + 8*cb
        I(f"v_cvt_pk_f16_f32 v{e}, v{T}, v{T+1}\nv_cvt_pk_f16_f32 v{e+1}, v{T+2}, v{T+3}")
        if cb: I(f"v_xor_b32 v{e+2}, 0x80008000, v{e}\nv_xor_b32 v{e+3}, 0x80008000, v{e+1}")
        else: I(f"v_mov_b32 v{e+2}, v{e}\nv_mov_b32 v{e+3}, v{e+1}")
        for i in range(4): I(f"v_xor_b32 v{e+4+i}, v{t0}, v{e+i}")
    def recur(nch, kf, a0, nsteps, scale, dst, cvt, fix=None):
        TW = V.get(2*nch, 2); P = V.get(4*nch, 2)
        for ch in range(nch):
            p = P + 4*ch
            I(f"v_add_f32 v{p+3}, v{a0[ch]}, v{kf[ch]}\nv_cos_f32 v{TW+2*ch}, v{kf[ch]}\nv_cos_f32 v{p}, v{a0[ch]}\nv_sin_f32 v{p+1}, v{a0[ch]}\nv_cos_f32 v{p+2}, v{p+3}\nv_sin_f32 v{p+3}, v{p+3}")
        I(f"s_mov_b32 s58, {fhex(scale)}")
        for ch in range(nch):
            p = P + 4*ch
            I(f"v_add_f32 v{TW+2*ch}, v{TW+2*ch}, v{TW+2*ch}")
            I(f"v_pk_mul_f32 {vr(p,2)}, {vr(p,2)}, s[58:59] op_sel_hi:[1,0]\nv_pk_mul_f32 {vr(p+2,2)}, {vr(p+2,2)}, s[58:59] op_sel_hi:[1,0]")
        for jp in range(nsteps//2):
            for ch in range(nch):
                p = P + 4*ch; rc, rs = dst(ch, jp)
                if fix and jp == 0 and fix(ch) is not None:
                    I(f"v_mul_f32 v{rc}, v{p}, v{fix(ch)}\n{cvt} v{rc}, v{rc}, v{p+2}")
                else: I(f"{cvt} v{rc}, v{p}, v{p+2}")
                I(f"{cvt} v{rs}, v{p+1}, v{p+3}")
            if jp + 1 < nsteps//2:
                for o in (0, 2):
                    for ch in range(nch):
                        p = P + 4*ch
                        I(f"v_pk_fma_f32 {vr(p+o,2)}, {vr(p+2-o,2)}, {vr(TW+2*ch,2)}, {vr(p+o,2)} op_sel_hi:[1,0,1] neg_lo:[0,0,1] neg_hi:[0,0,1]")
        V.put(TW, 2*nch); V.put(P, 4*nch)
    I(f"v_lshlrev_b32 v{t0}, 4, v{vN}\nv_lshl_add_u32 v{t0}, v{t2}, 1, v{t0}\nv_mul_f32 v{t3}, {fhex(16.0)}, v{fq}")
    for u in range(4):
        if u == 0:
            I(f"v_mov_b32 v{T}, 0x100\nv_cmp_eq_u32 vcc, 0, v{t0}\nv_cndmask_b32 v{T}, v{t0}, v{T}, vcc")
        else: I(f"v_add_u32 v{T+u}, {(u&1) + 8*(u>>1)}, v{t0}")
        I(f"v_cvt_f32_u32 v{T+u}, v{T+u}\nv_mul_f32 v{T+u}, {fhex(1/512)}, v{T+u}\nv_mul_f32 v{T+4+u}, v{T+u}, v{t3}")
    recur(4, [T+u for u in range(4)], [T+4+u for u in range(4)], 16, 0.125,
          lambda u, jp: (GA + 16*u + 8*(jp//4) + jp % 4, GA + 16*u + 8*(jp//4) + 4 + jp % 4), "v_cvt_pk_f16_f32")
    vAW = V.get(2, 1); vAR = V.get(4, 1)
    I(f"v_lshrrev_b32 v{t0}, 5, v0\nv_and_b32 v{t1}, 31, v0\nv_lshlrev_b32 v{t1}, 4, v{t1}\nv_lshl_add_u32 v{t1}, v{t0}, 10, v{t1}")
    vXW = V.get()
    I(f"v_add_u32 v{vXW}, {SCR_X}, v{t1}")
    I(f"v_and_b32 v{t0}, 1, v{t0}\nv_lshlrev_b32 v{t0}, 3, v{t0}\nv_and_or_b32 v{t0}, v0, 16, v{t0}\nv_xor_b32 v{t1}, v{t0}, v{t1}\nv_add_u32 v{vAW}, {SCR_A}, v{t1}\nv_xor_b32 v{vAW+1}, 8, v{vAW}")
    I(f"v_lshrrev_b32 v{vR}, 2, v{vN}\nv_and_b32 v{vC}, 3, v{vN}")
    I(f"v_lshlrev_b32 v{t0}, 10, v{vQ}\nv_lshl_add_u32 v{t0}, v{vR}, 7, v{t0}\nv_lshl_add_u32 v{t0}, v{vC}, 5, v{t0}")
    I(f"v_and_b32 v{t1}, 1, v{vQ}\nv_and_or_b32 v{t1}, v{vR}, 2, v{t1}\nv_lshl_add_u32 v{t0}, v{t1}, 3, v{t0}\nv_add_u32 v{vAR}, {SCR_A}, v{t0}")
    for tp in range(1, 4): I(f"v_xor_b32 v{vAR+tp}, {8*tp}, v{vAR}")
    I(f"s_add_u32 s{sTAG}, s{sTAG}, 0x7f4a7c15\ns_addc_u32 s{sTAG+1}, s{sTAG+1}, 0x9e3779b9")
    I(f"v_mov_b32 v{FLG}, s{sTAG}\nv_mov_b32 v{FLG+1}, s{sTAG+1}\nv_mov_b32 v{FLG+2}, s{sXCC}\nv_mov_b32 v{FLG+3}, 0")
    I(f"s_lshl_b32 s{sT}, s{sPOS}, 7\ns_lshl_b32 s58, s{sW}, 4\ns_add_u32 s{sT}, s{sT}, s58\ns_add_u32 s{sA+5}, s{sT}, {FL0}")
    stamp("tabA")
    XF = V.get(16, 4)
    def unpack(dst, src, n):
        for i in range(n):
            I(f"v_lshlrev_b32 v{dst+2*i}, 16, v{src+i}\nv_and_b32 v{dst+2*i+1}, 0xffff0000, v{src+i}")
    a.need(vr(XR, 8))
    stamp("xarr")
    w1_point('xarr')
    unpack(XF, XR, 8)
    def stats(X, wide, extra_scale):
        S, Q2 = T, T + 4
        I(f"v_pk_add_f32 {vr(S,2)}, {vr(X,2)}, {vr(X+2,2)}\nv_pk_add_f32 {vr(S+2,2)}, {vr(X+4,2)}, {vr(X+6,2)}")
        I(f"v_pk_mul_f32 {vr(Q2,2)}, {vr(X,2)}, {vr(X,2)}\nv_pk_mul_f32 {vr(Q2+2,2)}, {vr(X+2,2)}, {vr(X+2,2)}")
        for i in range(4, 16, 2):
            o = (i//2 % 2)*2
            if i >= 8: I(f"v_pk_add_f32 {vr(S+o,2)}, {vr(S+o,2)}, {vr(X+i,2)}")
            I(f"v_pk_fma_f32 {vr(Q2+o,2)}, {vr(X+i,2)}, {vr(X+i,2)}, {vr(Q2+o,2)}")
        I(f"v_pk_add_f32 {vr(S,2)}, {vr(S,2)}, {vr(S+2,2)}\nv_pk_add_f32 {vr(Q2,2)}, {vr(Q2,2)}, {vr(Q2+2,2)}")
        I(f"v_add_f32 v{S}, v{S}, v{S+1}\nv_add_f32 v{Q2}, v{Q2}, v{Q2+1}")
        dp = "row_mask:0xf bank_mask:0xf"
        if not wide:
            I(f"v_permlane16_swap_b32 v{S}, v{Q2}\nv_add_f32 v{S}, v{S}, v{Q2}")
            for d in ("quad_perm:[1,0,3,2]", "quad_perm:[2,3,0,1]", "row_half_mirror", "row_mirror"):
                I(f"v_add_f32_dpp v{S}, v{S}, v{S} {d} {dp}")
            I(f"v_mov_b32 v{Q2}, v{S}\nv_permlane16_swap_b32 v{S}, v{Q2}")
        else:
            I(f"v_permlane32_swap_b32 v{S}, v{Q2}\nv_add_f32 v{S}, v{S}, v{Q2}")
            for d in ("quad_perm:[2,3,0,1]", "row_ror:4", "row_ror:8"):
                I(f"v_add_f32_dpp v{S}, v{S}, v{S} {d} {dp}")
            I(f"v_mov_b32 v{Q2}, v{S}\nv_permlane16_swap_b32 v{S}, v{Q2}\nv_add_f32 v{S}, v{S}, v{Q2}")
            I(f"v_mov_b32 v{Q2}, v{S}\nv_permlane32_swap_b32 v{S}, v{Q2}")
        I(f"v_mul_f32 v{S}, {fhex(1/512)}, v{S}\nv_mul_f32 v{Q2}, {fhex(1/512)}, v{Q2}\nv_fma_f32 v{Q2}, -v{S}, v{S}, v{Q2}")
        I(f"v_max_f32 v{Q2}, 0, v{Q2}\nv_add_f32 v{Q2}, {fhex(1e-5)}, v{Q2}\nv_rsq_f32 v{Q2}, v{Q2}\nv_mul_f32 v{Q2}, {fhex(extra_scale)}, v{Q2}\nv_mul_f32 v{S}, v{S}, v{Q2}")
        return Q2, S
    R_, B_ = stats(XF, False, 0.125)
    a.wait_tok(tok_clr)
    I(f"s_mov_b64 exec, 1\nbuffer_store_dwordx4 {vr(FLG,4)}, off, {sr(S_WS,4)}, s{sA+5} sc1\ns_mov_b64 exec, -1")
    XN = V.get(8, 4)
    for i in range(8):
        I(f"v_pk_fma_f32 {vr(XF+2*i,2)}, {vr(XF+2*i,2)}, {vr(R_,2)}, {vr(B_,2)} op_sel_hi:[1,0,0] neg_lo:[0,0,1] neg_hi:[0,0,1]")
    for i in (0, 1, 4, 5, 2, 3, 6, 7):
        I(f"v_cvt_pk_f16_f32 v{XN+i}, v{XF+2*i}, v{XF+2*i+1}")
        if i == 5: I(f"ds_write2_b64 v{vAW}, {vr(XN,2)}, {vr(XN+4,2)} offset0:0 offset1:64")
    I(f"ds_write2_b64 v{vAW+1}, {vr(XN+2,2)}, {vr(XN+6,2)} offset0:0 offset1:64")
    a.wait_lg0(); I("s_barrier")
    V.put(XN, 8); V.put(XF, 16); V.put(ONES, 4)
    AF = V.get(32, 4)
    for tp in range(4):
        for ks in range(2):
            for hh in range(2):
                I(f"ds_read_b64_tr_b16 {vr(AF+8*tp+4*ks+2*hh,2)}, v{vAR+tp} offset:{ks*4096+hh*512}")
    D1 = V.get(32, 4)
    for tp in range(4):
        for ks in range(2):
            for cb in range(2):
                d = D1 + 16*cb + 4*tp
                I(f"v_mfma_f32_16x16x32_f16 {vr(d,4)}, {vr(AF+8*tp+4*ks,4)}, {vr(EA+8*cb+4*ks,4)}, {vr(d,4) if ks else 0}")
    Y1, Y2 = AF, AF + 16
    D2 = T
    for ks2 in range(2):
        for cb in range(2):
            for e in range(4):
                d = D1 + 16*cb + 8*ks2 + 2*e
                I(f"v_cvt_pk_f16_f32 v{Y1+8*cb+4*ks2+e}, v{d}, v{d+1}")
        for u in range(4):
            I(f"v_mfma_f32_16x16x32_f16 {vr(D2+4*u,4)}, {vr(Y1+8*(u&1)+4*ks2,4)}, {vr(GA+16*u+8*ks2,4)}, {vr(D2+4*u,4) if ks2 else 0}")
            for e in range(2):
                x = 8*((u>>1)) + 4*ks2 + 2*(u&1) + e
                I(f"v_xor_b32_dpp v{Y2+x}, v{Y1+x}, v{vSGN_ODD} quad_perm:[1,0,3,2] row_mask:0xf bank_mask:0xf")
        for u in range(4):
            I(f"v_mfma_f32_16x16x32_f16 {vr(D2+4*u,4)}, {vr(Y2+8*(u&1)+4*ks2,4)}, {vr(GA+16*u+8*ks2+4,4)}, {vr(D2+4*u,4)}")
    O = D1
    for u in range(4):
        for b in range(2):
            I(f"v_cvt_pk_f16_f32 v{O+4*b+u}, v{D2+4*u+2*b}, v{D2+4*u+2*b+1}")
        for b in range(2):
            I(f"v_min_u32 v{O+4*b+u}, -2, v{O+4*b+u}")
    I(f"buffer_store_dwordx4 {vr(O,4)}, v{vX1S}, {sr(S_WS,4)}, s{sA} offen sc1")
    I(f"buffer_store_dwordx4 {vr(O+4,4)}, v{vX1S}, {sr(S_WS,4)}, s{sA} offen offset:1024 sc1")
    stamp("Adone")
    V.put(EA, 16); V.put(GA, 64); V.put(AF, 32); V.put(vAW, 2); V.put(vAR, 4); V.put(vX1S)
    vX1L = V.get()
    I(f"v_lshrrev_b32 v{t0}, 7, v0\nv_bfe_u32 v{t1}, v0, 1, 2\nv_lshlrev_b32 v{t1}, 4, v{t1}\nv_lshl_add_u32 v{t0}, v{t0}, 6, v{t1}\nv_bfe_u32 v{t1}, v0, 3, 4\nv_add_u32 v{t0}, v{t0}, v{t1}")
    I(f"v_lshlrev_b32 v{vFL}, 7, v{t0}\nv_and_b32 v{t1}, 1, v0\nv_lshlrev_b32 v{t1}, 4, v{t1}\nv_lshl_add_u32 v{vX1L}, v{t0}, 13, v{t1}")
    I(f"s_lshr_b32 s{sT}, s{sM}, 3\ns_lshl_b32 s{sT}, s{sT}, 4\ns_add_u32 s{sA+5}, s{sT}, {FL0}\ns_add_u32 s62, s{sA+5}, {128*128}")
    flag_loads = [f"buffer_load_dwordx2 {vr(FV,2)}, v{vFL}, {sr(S_WS,4)}, s{sA+5} offen sc1", f"buffer_load_dwordx2 {vr(FV+2,2)}, v{vFL}, {sr(S_WS,4)}, s62 offen sc1"]
    for t in flag_loads: I(t)
    if cfg.get('wg_at') == 'adone': w_gather()
    V.put(D1, 32)
    HX = V.get(16, 4)
    I(f"ds_write_b128 v{vXW}, {vr(XR,4)}\nds_write_b128 v{vXW}, {vr(XR+4,4)} offset:512")
    I(f"v_and_b32 v{t0}, 1, v{vN}\nv_lshl_add_u32 v{t0}, v{t2}, 1, v{t0}\nv_lshlrev_b32 v{t0}, 10, v{t0}\nv_lshrrev_b32 v{t1}, 1, v{vN}\nv_lshl_add_u32 v{t0}, v{t1}, 7, v{t0}\nv_lshl_add_u32 v{t0}, v{vQ}, 4, v{t0}\nv_add_u32 v{t0}, {SCR_X}, v{t0}")
    I(f"ds_read_b128 {vr(XR,4)}, v{t0}\nds_read_b128 {vr(XR+4,4)}, v{t0} offset:64")
    V.put(vXW)
    MB = V.get(32, 4)
    TW1, TW2 = V.get(8, 2), V.get(8, 2)
    WF = V.get(16, 2)
    fp1 = V.get()
    I(f"v_cvt_f32_u32 v{fp1}, s{sG}")
    for i in range(4): I(f"v_fma_f32 v{T+i}, v{fq}, 4.0, {['0','1.0','2.0','2.0'][i]}")
    I(f"v_add_f32 v{T+3}, 1.0, v{T+3}\nv_mul_f32 v{t0}, {fhex(8.0)}, v{fn}\nv_add_f32 v{t0}, v{t0}, v{fp1}")
    def cs(ang, scale=None):
        for i in range(4): I(f"v_cos_f32 v{T+8+i}, v{ang+i}\nv_sin_f32 v{T+12+i}, v{ang+i}")
        if scale:
            for i in range(8): I(f"v_mul_f32 v{T+8+i}, {fhex(scale)}, v{T+8+i}")
    def frag(st, cvt, fwd):
        for i in range(4):
            c, s = f"v{T+8+i}", f"v{T+12+i}"
            if fwd: I(f"{cvt} v{MB+8*st+i}, {c}, {s}\n{cvt} v{MB+8*st+4+i}, -{s}, {c}")
            else: I(f"{cvt} v{MB+8*st+i}, {c}, -{s}\n{cvt} v{MB+8*st+4+i}, {s}, {c}")
    I(f"v_mul_f32 v{t1}, {fhex(1/128)}, v{t0}")
    for i in range(4): I(f"v_mul_f32 v{T+4+i}, v{T+i}, v{t1}")
    cs(T+4, 0.25); frag(0, "v_cvt_pk_f16_f32", True)
    for i in range(4):
        I(f"v_mul_f32 v{T+4+i}, {fhex(-1/16)}, v{T+4+i}")
    for i in range(4): I(f"v_cos_f32 v{TW1+i}, v{T+4+i}\nv_sin_f32 v{TW1+4+i}, v{T+4+i}")
    I(f"v_mul_f32 v{t1}, {fhex(1/16)}, v{fn}")
    for i in range(4): I(f"v_mul_f32 v{T+4+i}, v{T+i}, v{t1}")
    cs(T+4); frag(1, "v_cvt_pk_f16_f32", True); frag(2, "v_cvt_pk_bf16_f32", False)
    I(f"v_mul_f32 v{t1}, {fhex(1/128)}, v{fn}\ns_mov_b32 s58, {fhex(8.0)}")
    for i in range(4): I(f"v_fma_f32 v{T+4+i}, v{T+i}, s58, v{fp1}\nv_mul_f32 v{T+4+i}, v{T+4+i}, v{t1}")
    cs(T+4); frag(3, "v_cvt_pk_bf16_f32", False)
    for i in range(4): I(f"v_mul_f32 v{T+4+i}, {fhex(1/16)}, v{T+4+i}")
    for i in range(4): I(f"v_cos_f32 v{TW2+i}, v{T+4+i}\nv_sin_f32 v{TW2+4+i}, v{T+4+i}")
    V.put(fp1)
    unpack(HX, XR, 8); V.put(XR, 8)
    vBW, vBR, vOW, vOR = V.get(), V.get(), V.get(), V.get()
    I(f"v_and_b32 v{t0}, 1, v0\nv_mul_u32_u24 v{t0}, 4160, v{t0}\nv_lshrrev_b32 v{t1}, 1, v0\nv_lshl_add_u32 v{t0}, v{t1}, 2, v{t0}\nv_add_u32 v{vBW}, {SCR_BI}, v{t0}\nv_add_u32 v{vOR}, {SCR_BO}, v{t0}")
    I(f"v_lshlrev_b32 v{t0}, 4, v{vL}\nv_lshl_add_u32 v{t1}, v{t2}, 11, v{t0}\nv_lshrrev_b32 v{t3}, 1, v{t2}\nv_lshl_add_u32 v{t1}, v{t3}, 6, v{t1}\nv_add_u32 v{vBR}, {SCR_BI}, v{t1}")
    I(f"v_lshl_add_u32 v{t0}, v{t2}, 10, v{t0}\nv_add_u32 v{vOW}, {SCR_BO}, v{t0}")
    I(f"s_lshl_b32 s{sT}, s{sG}, 10\ns_lshl_b32 s58, s{sM}, 5\ns_add_u32 s{sA}, s{sT}, s58\ns_add_u32 s63, s{sA}, 0x100000")
    stamp("tabB")
    a.wait_vm0()
    stamp("ack1")
    a.label("L_f0")
    I(f"v_cmp_ne_u64 vcc, s[{sTAG}:{sTAG+1}], {vr(FV,2)}\nv_cmp_ne_u64 s[58:59], s[{sTAG}:{sTAG+1}], {vr(FV+2,2)}\ns_or_b64 vcc, vcc, s[58:59]\ns_cbranch_vccz L_f0ok")
    spin_check()
    for t in flag_loads: I(t)
    a.wait_vm0(); I("s_branch L_f0")
    a.label("L_f0ok")
    IN = V.get(8, 4)
    def poll(name, loads, fill=None):
        for t in loads: I(t)
        if fill: fill()
        a.label(f"L_{name}")
        a.wait_vm0(True)
        I(f"v_max3_u32 v{t0}, v{IN}, v{IN+1}, v{IN+2}\nv_max3_u32 v{t1}, v{IN+3}, v{IN+4}, v{IN+5}\nv_max3_u32 v{t0}, v{t0}, v{IN+6}, v{IN+7}\nv_max_u32 v{t0}, v{t0}, v{t1}")
        I(f"v_cmp_eq_u32 vcc, -1, v{t0}\ns_cbranch_vccz L_{name}ok")
        spin_check()
        for t in loads: I(t, track=False)
        I(f"s_branch L_{name}")
        a.label(f"L_{name}ok")
    EC = V.get(16, 4); GC = V.get(64, 4)
    def fill1():
        for ri in range(2):
            for i in range(4):
                I(f"v_lshlrev_b32 v{WF+4*ri+i}, 16, v{WRAW+4*ri+i}\nv_and_b32 v{WF+8+4*ri+i}, 0xffff0000, v{WRAW+4*ri+i}")
        I(f"s_cmp_lg_u32 s{sA+2}, 0\ns_cbranch_scc1 L_nosp2")
        for i in range(8): I(f"v_lshlrev_b32 v{WF+i}, 16, v{WSP+i}")
        a.label("L_nosp2")
        I(f"v_and_b32 v{t0}, 1, v{vN}\nv_lshl_add_u32 v{t0}, v{t2}, 1, v{t0}\nv_cvt_f32_u32 v{t0}, v{t0}\nv_mul_f32 v{t0}, {fhex(0.125)}, v{t0}")
        I(f"v_lshrrev_b32 v{t1}, 1, v{vN}\nv_and_b32 v{t3}, 1, v{t1}\nv_mul_u32_u24 v{t3}, 0x8000, v{t3}\nv_lshl_or_b32 v{t3}, v{t3}, 16, v{t3}\nv_cvt_f32_u32 v{t1}, v{t1}\nv_mul_f32 v{t1}, {fhex(0.125)}, v{t1}")
        I(f"v_mul_f32 v{T}, v{fq}, v{t0}\nv_add_f32 v{T}, v{T}, v{T}\nv_add_f32 v{T+1}, v{T}, v{t0}")
        for c in range(4):
            if c: I(f"v_add_f32 v{T}, v{T}, v{t1}\nv_add_f32 v{T+1}, v{T+1}, v{t1}")
            I(f"v_cos_f32 v{T+2}, v{T}\nv_sin_f32 v{T+3}, v{T}\nv_cos_f32 v{T+4}, v{T+1}\nv_sin_f32 v{T+5}, v{T+1}")
            I(f"v_cvt_pk_bf16_f32 v{EC+2*c}, v{T+2}, -v{T+3}\nv_cvt_pk_bf16_f32 v{EC+2*c+1}, v{T+4}, -v{T+5}")
        for i in range(8): I(f"v_xor_b32 v{EC+8+i}, v{t3}, v{EC+i}")
    poll("x1", [f"buffer_load_dwordx4 {vr(IN,4)}, v{vX1L}, {sr(S_WS,4)}, s{sA} offen sc1", f"buffer_load_dwordx4 {vr(IN+4,4)}, v{vX1L}, {sr(S_WS,4)}, s63 offen sc1"], fill1)
    stamp("x1ok")
    V.put(WRAW, 8); V.put(WSP, 8); V.put(vWG); V.put(vX1L); V.put(PF, 2)
    for h2 in range(2):
        for e in range(2):
            I(f"ds_write2st64_b32 v{vBW}, v{IN+4*h2+2*e}, v{IN+4*h2+2*e+1} offset0:{2*h2+8*e} offset1:{2*h2+8*e+4}")
    a.wait_lg0(); I("s_barrier")
    I(f"ds_read_b128 {vr(IN,4)}, v{vBR}\nds_read_b128 {vr(IN+4,4)}, v{vBR} offset:1024")
    I(f"v_and_b32 v{vFL}, 31, v{vL}\nv_lshlrev_b32 v{vFL}, 7, v{vFL}\ns_lshl_b32 s{sT}, s{sG}, 12\ns_add_u32 s{sT}, s{sT}, s{sA+5}")
    I(f"buffer_load_dword v{FV}, v{vFL}, {sr(S_WS,4)}, s{sT} offen offset:8 sc1")
    w1_point('x1ok')
    DB = V.get(16, 4)
    def bstage(st, op, data_is_a):
        for col in range(2):
            for ri in range(2):
                x, m = vr(IN+4*col, 4), vr(MB+8*st+4*ri, 4)
                I(f"{op} {vr(DB+8*col+4*ri,4)}, {x if data_is_a else m}, {m if data_is_a else x}, 0")
    def cmul(tw, cvt):
        for col in range(2):
            c, s = tw(col); R, J = DB + 8*col, DB + 8*col + 4; o = T + 8*col
            for e in (0, 2): I(f"v_pk_mul_f32 {vr(o+e,2)}, {vr(R+e,2)}, {vr(c+e,2)}\nv_pk_mul_f32 {vr(o+4+e,2)}, {vr(R+e,2)}, {vr(s+e,2)}")
            for e in (0, 2): I(f"v_pk_fma_f32 {vr(o+e,2)}, {vr(J+e,2)}, {vr(s+e,2)}, {vr(o+e,2)} neg_lo:[1,0,0] neg_hi:[1,0,0]\nv_pk_fma_f32 {vr(o+4+e,2)}, {vr(J+e,2)}, {vr(c+e,2)}, {vr(o+4+e,2)}")
        for col in range(2):
            o = T + 8*col
            for i in range(4): I(f"{cvt} v{IN+4*col+i}, v{o+i}, v{o+4+i}")
    bstage(0, "v_mfma_f32_16x16x32_f16", True); cmul(lambda c: (TW1, TW1+4), "v_cvt_pk_f16_f32")
    bstage(1, "v_mfma_f32_16x16x32_f16", False); cmul(lambda c: (WF+8*c, WF+8*c+4), "v_cvt_pk_bf16_f32")
    bstage(2, "v_mfma_f32_16x16x32_bf16", True); cmul(lambda c: (TW2, TW2+4), "v_cvt_pk_bf16_f32")
    bstage(3, "v_mfma_f32_16x16x32_bf16", True)
    for ri in range(2):
        for i in range(4): I(f"v_cvt_pk_bf16_f32 v{T+4*ri+i}, v{DB+4*ri+i}, v{DB+8+4*ri+i}")
        for i in range(4): I(f"v_min_u32 v{T+4*ri+i}, -2, v{T+4*ri+i}")
        I(f"ds_write_b128 v{vOW}, {vr(T+4*ri,4)} offset:{4160*ri}")
    a.wait_lg0(); I("s_barrier")
    for h2 in range(2):
        for e in range(2):
            I(f"ds_read2st64_b32 {vr(DB+4*h2+2*e,2)}, v{vOR} offset0:{2*h2+8*e} offset1:{2*h2+8*e+4}")
    for h2 in range(2):
        I(f"buffer_store_dwordx4 {vr(DB+4*h2,4)}, v{vX2S}, {sr(S_WS,4)}, s{sA+1} offen offset:{256*h2} sc1")
    stamp("Bdone")
    V.put(MB, 32); V.put(TW1, 8); V.put(TW2, 8); V.put(WF, 16); V.put(vBW); V.put(vBR); V.put(vOW); V.put(vOR); V.put(vX2S)
    I(f"s_or_b32 s{sT}, s2, s{sW}\ns_cmp_lg_u32 s{sT}, 0\ns_cbranch_scc1 L_nogen")
    I(f"s_mov_b32 s{sT}, {GEN}\ns_mov_b64 exec, 1")
    I(f"buffer_store_dwordx2 {vr(FLG,2)}, off, {sr(S_WS,4)}, s{sT} sc1", track=False)
    I("s_mov_b64 exec, -1")
    a.label("L_nogen")
    KF, A0 = V.get(4, 1), V.get(8, 1); FIX = V.get()
    I(f"v_lshl_add_u32 v{t0}, v{vR}, 3, v{vC}\nv_cvt_f32_u32 v{t0}, v{t0}")
    I(f"v_lshlrev_b32 v{t1}, 6, v{vQ}\nv_lshl_add_u32 v{t1}, v{t2}, 1, v{t1}\nv_cmp_eq_u32 vcc, 0, v{t1}\nv_cvt_f32_u32 v{t1}, v{t1}")
    I(f"v_mov_b32 v{FIX}, 0.5\nv_and_b32 v{t3}, 0x80000000, v{vSGN_ODD}\nv_xor_b32 v{FIX}, v{t3}, v{FIX}\nv_cndmask_b32 v{FIX}, 1.0, v{FIX}, vcc")
    for t in range(4):
        I(f"v_add_f32 v{t3}, {fhex(32.0*(t>>1)+4.0*(t&1))}, v{t0}\nv_mul_f32 v{t3}, {fhex(1/512)}, v{t3}\nv_mul_f32 v{KF+t}, {fhex(8.0)}, v{t3}")
        I(f"v_mul_f32 v{A0+2*t}, v{t3}, v{t1}\nv_add_f32 v{A0+2*t+1}, v{A0+2*t}, v{t3}")
    def ctab(half):
        chs = [(t, cb) for t in (2*half, 2*half+1) for cb in range(2)]
        recur(4, [KF+t for t, cb in chs], [A0+2*t+cb for t, cb in chs], 8, 2.0**-11,
              lambda ch, jp: (GC + 16*chs[ch][0] + 8*chs[ch][1] + jp, GC + 16*chs[ch][0] + 8*chs[ch][1] + 4 + jp), "v_cvt_pk_bf16_f32",
              fix=lambda ch: FIX if chs[ch][1] == 0 else None)
    ctab(0)
    vX2L, vCW, vCR, vHS = V.get(), V.get(), V.get(), V.get()
    I(f"v_lshrrev_b32 v{t0}, 1, v{vN}\nv_lshlrev_b32 v{t0}, 4, v{t0}\nv_lshl_add_u32 v{t0}, v{t2}, 2, v{t0}\nv_add_u32 v{t0}, v{t0}, v{vQ}\nv_and_b32 v{t1}, 1, v{vN}\nv_lshlrev_b32 v{t1}, 4, v{t1}\nv_lshl_add_u32 v{vX2L}, v{t0}, 14, v{t1}")
    I(f"s_lshl_b32 s{sT}, s{sPOS}, 5\ns_add_u32 s{sA}, s{sT}, {X2}\ns_add_u32 s63, s{sA}, 8192")
    a.wait_vm0()
    stamp("ack2")
    def fill2():
        I(f"v_cmp_ne_u32 vcc, s{sXCC}, v{FV}\ns_cmp_eq_u64 vcc, 0\ns_cselect_b32 s{sMODE}, {0 if cfg.get('force_slow') else 1}, 0")
        ctab(1)
        I(f"v_lshlrev_b32 v{t0}, 4, v{vL}\nv_add_u32 v{vCR}, {SCR_C}, v{t0}\nv_lshl_add_u32 v{vCW}, v{t2}, 12, v{vCR}")
        I(f"v_lshrrev_b32 v{t0}, 1, v{vN}\nv_lshlrev_b32 v{t0}, 11, v{t0}\nv_lshl_add_u32 v{t0}, v{vQ}, 8, v{t0}\nv_lshl_add_u32 v{t0}, v{t2}, 5, v{t0}\nv_and_b32 v{t1}, 1, v{vN}\nv_lshl_add_u32 v{vHS}, v{t1}, 4, v{t0}")
        I(f"v_xor_b32 v{vSGN_ODD}, 0x80008000, v{vSGN_ODD}")
        I(f"s_mov_b32 s60, 0x05040100\ns_mov_b32 s61, 0x07060302")
    poll("x2", [f"buffer_load_dwordx4 {vr(IN,4)}, v{vX2L}, {sr(S_WS,4)}, s{sA} offen sc1", f"buffer_load_dwordx4 {vr(IN+4,4)}, v{vX2L}, {sr(S_WS,4)}, s63 offen sc1"], fill2)
    stamp("x2ok")
    V.put(KF, 4); V.put(A0, 8); V.put(FIX); V.put(vX2L); V.put(fq); V.put(fn)
    FA = DB
    for cb in range(2):
        for e in range(4): I(f"v_perm_b32 v{FA+4*cb+e}, v{IN+2*e+1}, v{IN+2*e}, s{60+cb}")
    D1 = V.get(32, 4)
    k = 0
    for t in range(4):
        for cb in range(2):
            I(f"v_mfma_f32_16x16x32_bf16 {vr(D1+8*t+4*cb,4)}, {vr(FA+4*cb,4)}, {vr(GC+16*t+8*cb,4)}, 0")
            I(f"v_xor_b32_dpp v{FA+8+k}, v{FA+k}, v{vSGN_ODD} quad_perm:[1,0,3,2] row_mask:0xf bank_mask:0xf"); k += 1
    pend = []
    for t in range(4):
        for cb in range(2):
            I(f"v_mfma_f32_16x16x32_bf16 {vr(D1+8*t+4*cb,4)}, {vr(FA+8+4*cb,4)}, {vr(GC+16*t+8*cb+4,4)}, {vr(D1+8*t+4*cb,4)}")
    for t in range(4):
        for e in range(4): I(f"v_cvt_pk_bf16_f32 v{T+4*t+e}, v{D1+8*t+2*e}, v{D1+8*t+2*e+1}")
        I(f"ds_write_b128 v{vCW}, {vr(T+4*t,4)} offset:{1024*t}")
    a.wait_lg0(); I("s_barrier")
    ZF = GC
    for ks in range(4):
        for t in range(4): I(f"ds_read_b128 {vr(ZF+16*ks+4*t,4)}, v{vCR} offset:{4096*ks+1024*t}")
    w1_point('x2ok')
    for ks in range(4):
        for t in range(4):
            I(f"v_mfma_f32_16x16x32_bf16 {vr(HX+4*t,4)}, {vr(ZF+16*ks+4*t,4)}, {vr(EC+4*ks,4)}, {vr(HX+4*t,4)}")
    I(f"s_lshl_b32 s{sT}, s{sG}, 18\ns_lshr_b32 s58, s{sM}, 1\ns_lshl_b32 s58, s58, 14\ns_add_u32 s{sT}, s{sT}, s58\ns_and_b32 s58, s{sM}, 1\ns_lshl_b32 s58, s58, 7\ns_add_u32 s{sT}, s{sT}, s58")
    I(f"s_add_u32 s{sA}, s{sT}, {HN}\ns_add_u32 s{sA+1}, s{sT}, {HR}")
    R_, B_ = stats(HX, True, BETA)
    for i in range(8):
        I(f"v_pk_fma_f32 {vr(D1+2*i,2)}, {vr(HX+2*i,2)}, {vr(R_,2)}, {vr(B_,2)} op_sel_hi:[1,0,0] neg_lo:[0,0,1] neg_hi:[0,0,1]")
    for i in range(8): I(f"v_cvt_pk_bf16_f32 v{D1+16+i}, v{D1+2*i}, v{D1+2*i+1}")
    modal([f"buffer_store_dwordx4 {vr(D1+16+4*h,4)}, v{vHS}, {sr(S_WS,4)}, s{sA} offen offset:{1024*h}" for h in range(2)])
    for i in range(8): I(f"v_cvt_pk_bf16_f32 v{D1+24+i}, v{HX+2*i}, v{HX+2*i+1}")
    modal([f"buffer_store_dwordx4 {vr(D1+24+4*h,4)}, v{vHS}, {sr(S_WS,4)}, s{sA+1} offen offset:{1024*h}" for h in range(2)])
    stamp("Cdone")
    w1_point('cdone')
    V.put(EC, 16); V.put(GC, 64); V.put(HX, 16); V.put(DB, 16); V.put(IN, 8); V.put(vCW); V.put(vCR); V.put(vHS); V.put(vSGN_ODD); V.put(T, 16)
    srd(S_WD, 16, 1792*1024); srd(S_OUT, 18, 2048*1024)
    I(f"v_lshlrev_b32 v{vL16}, 4, v{vL}")
    I(f"v_lshlrev_b32 v{t0}, 2, v{vQ}\nv_add_u32 v{t0}, v{t0}, v{vR}\nv_mul_u32_u24 v{t0}, 224, v{t0}\nv_lshl_add_u32 v{vG1}, v{vC}, 3, v{t0}\nv_add_u32 v{vG1+1}, {IMG_U}, v{vG1}")
    I(f"v_cmp_gt_u32 vcc, 2, v{vC}\nv_add_u32 v{t0}, 96, v{vG1}\nv_add_u32 v{t1}, {IMG_U+96-16+112}, v{vG1}\nv_cndmask_b32 v{vG1+2}, v{t1}, v{t0}, vcc")
    I(f"v_add_u32 v{t0}, {96+112}, v{vG1}\nv_add_u32 v{t1}, {IMG_U+96-16}, v{vG1}\nv_cndmask_b32 v{vG1+3}, v{t1}, v{t0}, vcc")
    I(f"v_lshlrev_b32 v{t0}, 2, v{vQ}\nv_add_u32 v{t0}, v{t0}, v{vR}\nv_bfe_u32 v{t1}, v{t0}, 1, 2\nv_lshlrev_b32 v{t0}, 7, v{t0}\nv_lshl_add_u32 v{t0}, v{t1}, 5, v{t0}\nv_lshl_add_u32 v{t0}, v{vC}, 3, v{t0}")
    I(f"v_mul_u32_u24 v{t1}, 12288, v{t2}\nv_add_u32 v{t1}, {STG}, v{t1}\nv_add_u32 v{vS2}, v{t0}, v{t1}")
    for ct in range(1, 4): I(f"v_xor_b32 v{vS2+ct}, {32*ct}, v{vS2}")
    I(f"v_lshrrev_b32 v{t0}, 3, v{vL}\nv_and_b32 v{t1}, 6, v{t0}\nv_and_b32 v{t3}, 7, v{vL}\nv_xor_b32 v{t1}, v{t1}, v{t3}\nv_lshlrev_b32 v{t1}, 4, v{t1}\nv_lshl_add_u32 v{vD2}, v{t0}, 10, v{t1}")
    I(f"v_bfe_u32 v{t3}, v{t0}, 1, 1\nv_mul_u32_u24 v{t3}, 56, v{t3}\nv_and_b32 v{t0}, 5, v{t0}\nv_add_u32 v{t0}, v{t0}, v{t3}\nv_lshl_add_u32 v{vD2+1}, v{t0}, 10, v{t1}")
    I(f"s_mul_i32 s62, s{sW}, {448*1024}\ns_and_b32 s58, s{sM}, 7\ns_lshl_b32 s58, s58, 7\ns_add_u32 s62, s62, s58\ns_mul_i32 s63, s{sW}, 12288\ns_add_u32 s63, s63, {STG}")
    I(f"s_lshl_b32 s{sT}, s{sPOS}, 5\ns_lshl_b32 s58, s{sW}, 3\ns_add_u32 s{sT}, s{sT}, s58\ns_add_u32 s{sT}, s{sT}, {FL3}")
    I(f"v_lshrrev_b32 v{vFL}, 4, v{vFL}")
    I(f"s_lshl_b32 s58, s{sG}, 10\ns_lshl_b32 s59, s{sW}, 8\ns_add_u32 s58, s58, s59\ns_add_u32 s{sA+5}, s58, {FL3}")
    I(f"s_lshl_b32 s58, s{sG}, 18\ns_lshl_b32 s59, s{sW}, 16\ns_add_u32 s58, s58, s59\ns_add_u32 s{sA}, s58, {HN}")
    for rt in range(1, 4): I(f"s_add_u32 s{sA+rt}, s{sA}, {16384*rt}")
    a.wait_vm0()
    stamp("ack3")
    I("s_mov_b64 exec, 1")
    modal([f"buffer_store_dwordx2 {vr(FLG,2)}, off, {sr(S_WS,4)}, s{sT}"])
    I("s_mov_b64 exec, -1")
    V.put(D1, 32); V.put(vW1, 7)
    def flagpoll(name, soff, pre=None):
        a.label(f"L_{name}")
        I(f"buffer_load_dwordx2 {vr(FV,2)}, v{vFL}, {sr(S_WS,4)}, {soff} offen sc1")
        a.wait_vm0(True)
        I(f"v_cmp_ne_u64 vcc, s[{sTAG}:{sTAG+1}], {vr(FV,2)}\ns_cbranch_vccz L_{name}ok")
        spin_check()
        I(f"s_branch L_{name}")
        a.label(f"L_{name}ok")
    flagpoll("f3", f"s{sA+5}")
    stamp("f3ok")
    ACC = V.get(112, 4); DEPTH = cfg.get('depth', 6); ACT = V.get(16*DEPTH, 4); WR_ = V.get(16, 4)
    def act_load(ks, rt):
        t = f"buffer_load_dwordx4 {vr(ACT+16*(ks%DEPTH)+4*rt,4)}, v{vL16}, {sr(S_WS,4)}, s{sA+rt} offen offset:{1024*(ks%4)} sc1"
        if ks % 4 == 3: t += f"\ns_add_u32 s{sA+rt}, s{sA+rt}, 4096"
        return t
    for ks in range(DEPTH-1):
        for rt in range(4): I(act_load(ks, rt))
    I("s_barrier")
    def w_read(n, hh):
        ks, j = divmod(n, 7)
        d = vr(WR_+4*(n%4)+2*hh, 2)
        if j < 3: return f"ds_read_b64_tr_b16 {d}, v{vG1} offset:{ks*3584+hh*112+j*32}"
        if j < 6: return f"ds_read_b64_tr_b16 {d}, v{vG1+1} offset:{ks*3584+(1-hh)*112+(j-3)*32}"
        return f"ds_read_b64_tr_b16 {d}, v{vG1+2+hh} offset:{ks*3584}"
    def w2_dma(k2, ii):
        hh, qq = ii >> 1, ii & 1
        if k2 < 8: fr, pat = 56*k2 + 8*ii, 0
        elif k2 < 12: fr, pat = 56*(2*(k2-8) + hh) + 32 + 8*qq, 0
        else: fr, pat = 56*(4*(k2-12) + 2*hh) + 48 + 2*qq, 1
        return (f"s_add_u32 s61, s62, {fr*1024}\ns_add_u32 m0, s63, {(k2%3)*4096+ii*1024}", f"buffer_load_dwordx4 v{vD2+pat}, {sr(S_WD,4)}, s61 offen lds")
    def w2_read(k2, ct, hh):
        return f"ds_read_b64_tr_b16 {ar(16*k2+4*ct+2*hh,2)}, v{vS2+ct} offset:{(k2%3)*4096+hh*2048}"
    LAG = cfg.get('lag', 3)
    w2_issue = {}; w2_rd = {}
    for k2 in range(14):
        w2_issue[k2] = (k2//3)*(LAG+1) + (k2 % 3)
        w2_rd[k2] = w2_issue[k2] + LAG
    w2tok = {}; w2rdtok = {}
    for n in range(3):
        for hh in range(2): I(w_read(n, hh))
    NM = 16*28
    for ks in range(16):
        fill = {i: [] for i in range(28)}
        for j in range(7):
            n = ks*7 + j + 3
            if n < 112:
                fill[4*j].append(('v', w_read(n, 0))); fill[4*j+1].append(('v', w_read(n, 1)))
        if ks + DEPTH - 1 < 16:
            for rt in range(4): fill[2+4*rt].append(('v', act_load(ks+DEPTH-1, rt)))
        for k2 in range(14):
            if w2_rd[k2] == ks:
                fill[0].insert(0, ('wt', k2))
                slots = [0, 1, 4, 5, 8, 9, 12, 13]
                for x in range(8): fill[slots[x]].append(('r2', (k2, w2_read(k2, x >> 1, x & 1))))
            if w2_issue[k2] == ks:
                for ii in range(4): fill[16+2*ii + (ii > 0)*0].append(('dma', (k2, ii)))
        for i in range(28):
            j, rt = divmod(i, 4); n = ks*7 + j
            d = vr(ACC+16*j+4*rt, 4)
            I(f"v_mfma_f32_16x16x32_bf16 {d}, {vr(WR_+4*(n%4),4)}, {vr(ACT+16*(ks%DEPTH)+4*rt,4)}, {d if ks else 0}")
            if i < 27:
                j2, rt2 = divmod(i+1, 4); a.need(vr(WR_+4*((ks*7+j2)%4),4) + " " + vr(ACT+16*(ks%DEPTH)+4*rt2,4))
            elif ks < 15: a.need(vr(WR_+4*((ks*7+7)%4),4) + " " + vr(ACT+16*((ks+1)%DEPTH),4))
            for kind, x in fill[i]:
                if kind == 'v': I(x)
                elif kind == 'wt': a.wait_tok(w2tok[x])
                elif kind == 'r2': w2rdtok[x[0]] = I(x[1])
                elif kind == 'dma':
                    if x[1] == 0 and x[0] >= 3: a.wait_tok(w2rdtok[x[0]-3])
                    s, v = w2_dma(*x); I(s); w2tok[x[0]] = I(v)
    stamp("G1done")
    I("s_barrier")
    I(f"s_lshl_b32 s58, s{sG}, 2\ns_add_u32 s58, s58, s{sW}\ns_lshl_b32 s58, s58, 5\ns_add_u32 s58, s58, s{sM}\ns_mul_i32 s{sA}, s58, 7168\ns_add_u32 s{sA}, s{sA}, {HH}\ns_add_u32 s{sA+1}, s{sA}, 4096")
    I(f"s_lshl_b32 s58, s58, 3\ns_add_u32 s{sA+2}, s58, {FL4}")
    I(f"s_lshr_b32 s58, s{sPOS}, 3\ns_lshl_b32 s58, s58, 5\ns_lshl_b32 s59, s{sW}, 3\ns_add_u32 s58, s58, s59\ns_mul_i32 s{sA+3}, s58, 7168\ns_add_u32 s{sA+3}, s{sA+3}, {HH}")
    I(f"s_lshl_b32 s58, s58, 3\ns_add_u32 s{sA+4}, s58, {FL4}\ns_add_u32 s{sA+5}, s{sA+4}, 0x2000\ns_add_u32 s{sT}, s{sA+2}, 0x2000")
    I(f"v_and_b32 v{vFL}, 56, v{vFL}")
    I(f"s_mov_b32 s58, {fhex(KAPPA)}\ns_mov_b32 s59, s58")
    GT = WR_
    HP = ACT
    def gelu(G, U, n, dst, tb):
        s = GT + tb
        for e in range(0, n, 2): I(f"v_pk_fma_f32 {vr(s+e,2)}, {vr(G+e,2)}, {vr(G+e,2)}, s[58:59]")
        for e in range(0, n, 2): I(f"v_pk_mul_f32 {vr(s+e,2)}, {vr(s+e,2)}, {vr(G+e,2)}")
        for e in range(n): I(f"v_exp_f32 v{s+e}, -v{s+e}")
        for e in range(0, n, 2): I(f"v_pk_mul_f32 {vr(G+e,2)}, {vr(G+e,2)}, {vr(U+e,2)}")
        for e in range(0, n, 2): I(f"v_pk_add_f32 {vr(s+e,2)}, {vr(s+e,2)}, 1.0 op_sel_hi:[1,0]")
        for e in range(n): I(f"v_rcp_f32 v{s+e}, v{s+e}")
        for e in range(0, n, 2): I(f"v_pk_mul_f32 {vr(G+e,2)}, {vr(G+e,2)}, {vr(s+e,2)}")
        for e in range(0, n, 2): I(f"v_cvt_pk_bf16_f32 v{dst+e//2}, v{G+e}, v{G+e+1}")
    step = [16]
    def w2_tail_step():
        ks = step[0]; step[0] += 1
        for k2 in range(14):
            if w2_rd[k2] == ks:
                a.wait_tok(w2tok[k2])
                for x in range(8): w2rdtok[k2] = I(w2_read(k2, x >> 1, x & 1))
        for k2 in range(14):
            if w2_issue[k2] == ks:
                a.wait_tok(w2rdtok[k2-3])
                for ii in range(4):
                    s, v = w2_dma(k2, ii); I(s); w2tok[k2] = I(v)
    def hstore(slot, r):
        return modal([f"buffer_store_dwordx4 {vr(r,4)}, v{vL16}, {sr(S_WS,4)}, s{sA+slot//4} offen offset:{1024*(slot%4)}"])
    for rt in range(4):
        h = HP + 4*(rt % 2)
        gelu(ACC+4*rt, ACC+48+4*rt, 4, h, 0); gelu(ACC+16+4*rt, ACC+64+4*rt, 4, h+2, 4)
        tk1 = hstore(rt, h)
        if rt % 2 == 0: w2_tail_step()
    for rp in range(2):
        h = HP + 4*rp
        gelu(ACC+32+8*rp, ACC+80+8*rp, 4, h, 0); gelu(ACC+36+8*rp, ACC+84+8*rp, 4, h+2, 4)
        hstore(4+rp, h)
    w2_tail_step()
    a.wait_tok(tk1)
    I("s_mov_b64 exec, 1")
    modal([f"buffer_store_dwordx2 {vr(FLG,2)}, off, {sr(S_WS,4)}, s{sA+2}"])
    I("s_mov_b64 exec, -1")
    for rt in range(4):
        m = ACC + 96 + 4*rt
        I(f"v_permlane32_swap_b32 v{m}, v{m+2}\nv_permlane32_swap_b32 v{m+1}, v{m+3}")
    for rt in range(4):
        m = ACC + 96 + 4*rt
        gelu(m, m+2, 2, HP+rt, 2*rt)
    hstore(6, HP)
    stamp("gelu")
    flagpoll("f4a", f"s{sA+4}")
    I("s_mov_b64 exec, 1")
    modal([f"buffer_store_dwordx2 {vr(FLG,2)}, off, {sr(S_WS,4)}, s{sT}"])
    I("s_mov_b64 exec, -1")
    stamp("f4a")
    V.put(ACC, 112); V.put(ACT, 16*DEPTH); V.put(WR_, 16)
    AC2 = V.get(64, 4)
    HF = V.get(16*8, 4)
    RES = V.get(8, 4)
    def h_load(k2, x):
        if k2 < 8: p, slot = k2, x
        elif k2 < 12: p, slot = 2*(k2-8) + (x & 1), 4 + (x >> 1)
        else: p, slot = 4*(k2-12) + x, 6
        off = p*7168 + slot*1024
        return f"s_add_u32 s60, s{sA+3}, {off & ~4095}\nbuffer_load_dwordx4 {vr(HF+16*(k2%8)+4*x,4)}, v{vL16}, {sr(S_WS,4)}, s60 offen offset:{off & 4095} sc1"
    for k2 in range(8):
        for x in range(4): I(h_load(k2, x))
    while step[0] <= max(w2_rd.values()): w2_tail_step()
    def mm(k2, rt, ct):
        d = vr(AC2+16*rt+4*ct, 4)
        I(f"v_mfma_f32_16x16x32_bf16 {d}, {ar(16*k2+4*ct,4)}, {vr(HF+16*(k2%8)+4*rt,4)}, {d if k2 else 0}")
    for k2 in range(2):
        for rt in range(4):
            for ct in range(4): mm(k2, rt, ct)
    flagpoll("f4b", f"s{sA+5}")
    vO, vRS, vPW, vPR = V.get(), V.get(), V.get(4, 1), V.get(2, 1)
    late = [h_load(k2, x) for k2 in range(8, 14) for x in range(4)]
    misc = [f"v_lshrrev_b32 v{t0}, 3, v{vL}", f"v_and_b32 v{t1}, 7, v{vL}", f"v_lshlrev_b32 v{t3}, 4, v{t1}", f"v_lshl_add_u32 v{vO}, v{t0}, 18, v{t3}",
            f"v_lshlrev_b32 v{t3}, 4, v{t0}", f"v_lshl_add_u32 v{vRS}, v{t1}, 8, v{t3}",
            f"v_lshlrev_b32 v{t1}, 1, v{t1}", f"v_xor_b32 v{t1}, v{t1}, v{t0}", f"v_lshl_add_u32 v{t0}, v{t2}, 4, v{t0}", f"v_lshlrev_b32 v{t0}, 8, v{t0}", f"v_lshl_add_u32 v{vPR}, v{t1}, 4, v{t0}", f"v_xor_b32 v{vPR+1}, 16, v{vPR}",
            f"v_and_b32 v{t0}, 7, v{vN}", f"v_xor_b32 v{t0}, v{t0}, v{vQ}", f"v_lshlrev_b32 v{t0}, 4, v{t0}", f"v_lshl_add_u32 v{t0}, v{vN}, 8, v{t0}", f"v_lshl_add_u32 v{vPW}, v{t2}, 14, v{t0}",
            f"v_xor_b32 v{vPW+1}, 64, v{vPW}", f"v_xor_b32 v{vPW+2}, 0x80, v{vPW}", f"v_xor_b32 v{vPW+3}, 0xc0, v{vPW}"]
    I(f"s_lshr_b32 s58, s{sPOS}, 3\ns_lshl_b32 s58, s58, 2\ns_add_u32 s58, s58, s{sW}\ns_and_b32 s59, s{sM}, 7")
    I(f"s_lshl_b32 s{sA}, s58, 14\ns_lshl_b32 s61, s59, 11\ns_add_u32 s{sA}, s{sA}, s61\ns_add_u32 s{sA}, s{sA}, {HR}")
    I(f"s_lshl_b32 s{sA+1}, s58, 11\ns_lshl_b32 s61, s59, 7\ns_add_u32 s{sA+1}, s{sA+1}, s61")
    for k2 in range(2, 8):
        for rt in range(4):
            for ct in range(4):
                mm(k2, rt, ct)
                if ct == 0: I(late.pop(0))
                elif misc: I(misc.pop(0))
    for p in range(2): I(f"buffer_load_dwordx4 {vr(RES+4*p,4)}, v{vRS}, {sr(S_WS,4)}, s{sA} offen offset:{128*p} sc1")
    for k2 in range(8, 12):
        b = HF + 16*(k2 % 8)
        for o in (0, 8): I(f"v_swap_b32 v{b+o+2}, v{b+o+4}\nv_swap_b32 v{b+o+3}, v{b+o+5}")
    for k2 in range(12, 14):
        b = HF + 16*(k2 % 8)
        for x in range(4):
            for y in range(x+1, 4): I(f"v_swap_b32 v{b+4*x+y}, v{b+4*y+x}")
    wr = []
    for rt in range(4):
        n = 0
        for k2 in range(8, 14):
            for ct in range(4):
                mm(k2, rt, ct); n += 1
                if wr and n >= 6 and n % 4 == 2: I(wr.pop(0))
        wr = [f"ds_write_b128 v{vPW+ct}, {vr(AC2+16*rt+4*ct,4)} offset:{4096*rt}" for ct in range(4)]
    for t in wr: I(t)
    stamp("G2done")
    a.wait_lg0(); I("s_barrier")
    PR = HF
    for p in range(2):
        for e in range(2):
            for j in range(4): I(f"ds_read_b128 {vr(PR+32*p+16*e+4*j,4)}, v{vPR+e} offset:{16384*j+2048*p}")
    RF = AC2
    unpack(RF, RES, 8)
    I(f"s_mov_b32 s58, {fhex(1/(BETA*BETA))}\ns_mov_b32 s59, s58")
    for p in range(2):
        for e in range(2):
            b = PR + 32*p + 16*e
            for o in (0, 2): I(f"v_pk_add_f32 {vr(b+o,2)}, {vr(b+o,2)}, {vr(b+4+o,2)}\nv_pk_add_f32 {vr(b+8+o,2)}, {vr(b+8+o,2)}, {vr(b+12+o,2)}")
            for o in (0, 2): I(f"v_pk_add_f32 {vr(b+o,2)}, {vr(b+o,2)}, {vr(b+8+o,2)}")
            for o in (0, 2): I(f"v_pk_fma_f32 {vr(b+o,2)}, {vr(b+o,2)}, s[58:59], {vr(RF+8*p+4*e+o,2)}")
            for o in (0, 2): I(f"v_cvt_pk_bf16_f32 v{RES+4*p+2*e+o//2}, v{b+o}, v{b+o+1}")
        I(f"buffer_store_dwordx4 {vr(RES+4*p,4)}, v{vO}, {sr(S_OUT,4)}, s{sA+1} offen offset:{1024*p} {cfg.get('outflag','')}")
    if cfg.get('padto'):
        a.label("L_padto")
        I(f"s_memrealtime s[98:99]\ns_sub_u32 s98, s98, s100\ns_cmp_lt_u32 s98, {cfg['padto']}\ns_cbranch_scc1 L_padto")
    if dbg:
        a.wait_vm0(); stamp("end"); a.wait_lg0()
        I(f"s_lshl_b32 s58, s2, 2\ns_add_u32 s58, s58, s{sW}\ns_lshl_b32 s58, s58, 7\ns_add_u32 s58, s58, {STAMP}\ns_mov_b64 exec, 1")
        for i in range(nst[0]):
            I(f"v_mov_b32 v4, s{STS[i]}\nbuffer_store_dword v4, off, {sr(S_WS,4)}, s58 offset:{4*i}")
        I(f"v_mov_b32 v4, s{sSPIN}\nbuffer_store_dword v4, off, {sr(S_WS,4)}, s58 offset:120\nv_mov_b32 v4, s{sMODE}\nbuffer_store_dword v4, off, {sr(S_WS,4)}, s58 offset:124")
    a.label("L_end")
    I("s_endpgm")
    for n, lines in cfg.get('_tail', []):
        a.label(f"L_slow{n}")
        for t in lines: a.raw("  " + t + " sc1")
        a.raw("  s_nop 1")
        a.raw(f"  s_branch L_back{n}")
    a.raw(".p2align 8\nL_pad:\n.fill 8192, 4, 0xbf810000" if cfg.get('pad', True) else "")
    a.raw(f'''.section .rodata,"a"
.p2align 6
.amdhsa_kernel {NAME}_kernel
  .amdhsa_next_free_vgpr 512
  .amdhsa_next_free_sgpr 102
  .amdhsa_accum_offset 256
  .amdhsa_group_segment_fixed_size 0
  .amdhsa_kernarg_size 80
  .amdhsa_user_sgpr_count 2
  .amdhsa_user_sgpr_kernarg_segment_ptr 1
  .amdhsa_system_sgpr_workgroup_id_x 1
.end_amdhsa_kernel''')
    return a

if __name__ == "__main__":
    import json
    out = sys.argv[1]
    cfg = json.loads(sys.argv[2]) if len(sys.argv) > 2 else {}
    a = gen(cfg)
    hdr = ""
    open(out, "w").write(hdr + a.text())
    json.dump(cfg.get('stamp_names', []), open(out + ".stamps", "w"))
    print("instrs", sum(a.count.values()), "nops", a.count.get('s_nop', 0), "waits", a.count.get('s_waitcnt', 0))
```

```python
import sys, math
from asmlib import *
NAME = "sequential_preLN__spectral_gfnet__glu_gated_geglu__prompt"
BETA = struct.unpack('<f', struct.pack('<f', (0.044715 * 2 * math.sqrt(2/math.pi) * math.log2(math.e)) ** (1/3)))[0]
KAPPA = 2 * math.sqrt(2/math.pi) * math.log2(math.e) / BETA
X1, HN, HR, GR = 0, 0, 0x200000, 0x400000
FL0, FL3, FL4, GEN, STAMP = 0x1000000, 0x1010000, 0x1020000, 0x1030000, 0x1040000
WS_SIZE = 0x1100000
IMG_G, IMG_U, STG = 0, 65536, 131072
SCR_A, SCR_X, SCR_W, SCR_BI, SCR_BO, SCR_C = STG, STG + 8192, STG + 24576, STG + 8320, STG, STG + 16384
SPIN = 0x20000
S_WR, S_WI, S_W1, S_WU, S_WS, S_OUT = 24, 28, 32, 36, 40, 44
S_WD = S_WR
sW, sG, sM, sPOS, sTAG, sMODE, sSPIN, sXCC = 48, 49, 50, 51, 52, 54, 55, 56
sT = 57
sA = 64
STS = list(range(70, 102, 2)) + [10, 4, 6, 8, 20]

class Alloc:
    def __init__(self, lo, hi): self.free = list(range(lo, hi))
    def get(self, n=1, al=None):
        al = al or (2 if n > 1 else 1)
        fs = set(self.free)
        for b in self.free:
            if b % al == 0 and all((b + i) in fs for i in range(n)):
                for i in range(n): self.free.remove(b + i)
                return b
        raise Exception(f"out of vgprs ({n})")
    def put(self, b, n=1):
        for i in range(n):
            assert b + i not in self.free
            self.free.append(b + i)
        self.free.sort()

def gen(cfg):
    a = Asm(); I = a.I
    dbg = cfg.get('stamps', False)
    nst = [0]
    def stamp(name):
        if dbg and (name in cfg.get('extra', []) or (not name.startswith('_') and name not in cfg.get('skip', []))):
            I(f"s_memrealtime s[{STS[nst[0]]}:{STS[nst[0]]+1}]"); nst[0] += 1
            cfg.setdefault('stamp_names', []).append(name)
    V = Alloc(32, 256)
    vL, vN, vQ = 1, 2, 3
    t0, t1, t2, t3, FLG, FV, vFL, vL16, vG1, vS2, vD2, vW1 = 4, 5, 6, 7, 8, 12, 16, 17, 18, 26, 30, 31
    NT = cfg.get('nt', 'nt')
    lab = [0]
    def srd(s, base, size):
        I(f"s_mov_b32 s{s}, s{base}\ns_mov_b32 s{s+1}, s{base+1}\ns_mov_b32 s{s+2}, {size}\ns_mov_b32 s{s+3}, 0x20000")
    def modal(lines):
        for t in lines: a.need(t)
        lab[0] += 1; n = lab[0]
        I(f"s_cmp_eq_u32 s{sMODE}, 0\ns_cbranch_scc1 L_slow{n}")
        tok = None
        for t in lines: tok = I(t)
        a.label(f"L_back{n}")
        cfg.setdefault('_tail', []).append((n, lines))
        return tok
    def spin_check():
        I(f"s_add_u32 s{sSPIN}, s{sSPIN}, 1\ns_cmp_ge_u32 s{sSPIN}, {SPIN}\ns_cbranch_scc1 L_end")

    a.raw(f"; @launch grid=(256,1,1) block=(256,1,1) lds=163840")
    a.raw('.amdgcn_target "amdgcn-amd-amdhsa--gfx950"\n.text')
    a.raw(f".globl {NAME}_kernel\n.p2align 8\n.type {NAME}_kernel,@function\n{NAME}_kernel:")
    I("s_cmp_ge_u32 s2, 256\ns_cbranch_scc0 L_go\ns_endpgm")
    a.label("L_go")
    I("s_load_dwordx16 s[4:19], s[0:1], 0\ns_load_dwordx4 s[20:23], s[0:1], 64")
    PF = V.get(2)
    I(f"s_getpc_b64 s[60:61]\ns_lshr_b32 s{sM}, s2, 3\ns_lshl_b32 s58, s{sM}, 10\nv_lshl_add_u32 v{t1}, v0, 2, s58\nglobal_load_dword v{PF}, v{t1}, s[60:61]")
    stamp("start")
    if cfg.get('padto'): I("s_memrealtime s[100:101]")
    I(f"s_and_b32 s{sG}, s2, 7\ns_lshr_b32 s{sM}, s2, 3\ns_lshl_b32 s{sPOS}, s{sG}, 5\ns_add_u32 s{sPOS}, s{sPOS}, s{sM}")
    XR = V.get(8, 4)
    I(f"v_lshrrev_b32 v{t0}, 5, v0\nv_and_b32 v{t1}, 31, v0\nv_lshlrev_b32 v{t0}, 18, v{t0}\nv_lshlrev_b32 v{t1}, 4, v{t1}\ns_lshl_b32 s{sA}, s{sPOS}, 10")
    I(f"v_add3_u32 v{t0}, v{t0}, v{t1}, s{sA}")
    I(f"v_and_b32 v{vL}, 63, v0\nv_lshrrev_b32 v{t2}, 6, v0\nv_and_b32 v{vN}, 15, v0\nv_bfe_u32 v{vQ}, v0, 4, 2\nv_readfirstlane_b32 s{sW}, v{t2}")
    vX1S, vX2S = V.get(), V.get()
    ONES = V.get(4, 4)
    for i in range(4): I(f"v_mov_b32 v{ONES+i}, -1")
    I(f"v_lshlrev_b32 v{t1}, 19, v{vQ}\nv_lshl_add_u32 v{t1}, v{vN}, 4, v{t1}\nv_lshl_add_u32 v{vX1S}, v{t2}, 8, v{t1}")
    I(f"v_bfe_u32 v{t1}, v0, 4, 3\nv_lshlrev_b32 v{t1}, 20, v{t1}\nv_bfe_u32 v{t3}, v0, 3, 1\nv_lshl_add_u32 v{t1}, v{t3}, 9, v{t1}\nv_and_b32 v{t3}, 0x80, v0\nv_add_u32 v{t1}, v{t1}, v{t3}\nv_and_b32 v{t3}, 7, v0\nv_lshl_add_u32 v{vX2S}, v{t3}, 4, v{t1}")
    I(f"v_bfe_u32 v{t1}, v0, 4, 3\nv_mul_u32_u24 v{t1}, 4112, v{t1}\nv_mad_u32_u24 v{t3}, v{vN}, 34, v{t1}")
    I(f"s_mul_i32 s58, s{sG}, 514\ns_mul_i32 s59, s{sM}, {8*4112}\ns_add_u32 s59, s59, s58\nv_add_u32 v{t3}, s59, v{t3}")
    I(f"s_add_u32 s{sA+1}, s{sA}, {GR}\ns_add_u32 s63, s{sA}, 0x40000\ns_mov_b32 s{sSPIN}, 0\ns_getreg_b32 s{sXCC}, hwreg(HW_REG_XCC_ID)\ns_and_b32 s{sXCC}, s{sXCC}, 15")
    I(f"global_load_dwordx4 {vr(XR,4)}, v{t0}, s[4:5] {NT}\nglobal_load_dwordx4 {vr(XR+4,4)}, v{t0}, s[4:5] offset:512 {NT}")
    I(f"s_cmp_lt_u32 s{sW}, 2\ns_cselect_b32 s60, s6, s8\ns_cselect_b32 s61, s7, s9")
    I(f"global_load_dword v{PF+1}, v{t3}, s[60:61] {cfg.get('ntw', NT)}")
    I(f"s_add_u32 s60, s22, {GEN}\ns_addc_u32 s61, s23, 0")
    I(f"s_load_dwordx2 s[{sTAG}:{sTAG+1}], s[60:61], 0")
    srd(S_WS, 22, WS_SIZE)
    I(f"buffer_store_dwordx4 {vr(ONES,4)}, v{vX1S}, {sr(S_WS,4)}, s{sA} offen sc1")
    I(f"buffer_store_dwordx4 {vr(ONES,4)}, v{vX1S}, {sr(S_WS,4)}, s63 offen sc1")
    I(f"buffer_store_dwordx4 {vr(ONES,4)}, v{vX2S}, {sr(S_WS,4)}, s{sA+1} offen sc1")
    tok_clr = I(f"buffer_store_dwordx4 {vr(ONES,4)}, v{vX2S}, {sr(S_WS,4)}, s{sA+1} offen offset:256 sc1")
    stamp('_clr')
    I(f"v_lshrrev_b32 v{t0}, 3, v{vL}\nv_and_b32 v{t1}, 6, v{t0}\nv_and_b32 v{t3}, 7, v{vL}\nv_xor_b32 v{t1}, v{t1}, v{t3}\nv_lshlrev_b32 v{t1}, 4, v{t1}\nv_lshl_add_u32 v{vD2}, v{t0}, 10, v{t1}")
    I(f"v_and_b32 v{t3}, 4, v{t0}\nv_add_u32 v{t0}, v{t0}, v{t3}\nv_mul_u32_u24 v{t0}, 3584, v{t0}\nv_add_u32 v{vW1}, v{t0}, v{t1}\nv_lshlrev_b32 v{vL16}, 4, v{vL}")
    srd(S_W1, 12, 512*3584); srd(S_WU, 14, 512*3584)
    I(f"s_and_b32 s58, s{sW}, 1\ns_lshl_b32 s58, s58, 4\ns_lshr_b32 s59, s{sW}, 1\ns_lshl_b32 s59, s59, 2\ns_add_u32 s58, s58, s59\ns_mul_i32 s58, s58, 3584\ns_lshl_b32 s59, s{sM}, 7\ns_add_u32 s{sA+3}, s58, s59")
    I(f"s_mov_b32 s3, {32*3584}\ns_mov_b32 s21, {32*3584}\ns_lshl_b32 s{sA+4}, s{sW}, 10")
    I(f"s_cmp_lt_u32 s{sM}, 28\ns_cbranch_scc1 L_reg0")
    I(f"s_mov_b32 s{S_W1}, s16\ns_mov_b32 s{S_W1+1}, s17\ns_add_u32 s{S_WU}, s16, 1024\ns_addc_u32 s{S_WU+1}, s17, 0\ns_mov_b32 s{S_WU+2}, {512*3584-1024}")
    I(f"v_mov_b32 v{vW1}, v{vL16}\ns_sub_u32 s58, s{sM}, 28\ns_mul_i32 s58, s58, {448*1024}\ns_lshl_b32 s59, s{sW}, 13\ns_add_u32 s{sA+3}, s58, s59\ns_mov_b32 s3, 2048\ns_mov_b32 s21, {65536-6144}")
    a.label("L_reg0")
    w1n = [0]
    def w1_pair():
        ks = w1n[0]; w1n[0] += 1
        I(f"s_add_u32 m0, s{sA+4}, {IMG_G + ks*4096}\nbuffer_load_dwordx4 v{vW1}, {sr(S_W1,4)}, s{sA+3} offen lds")
        I(f"s_add_u32 m0, s{sA+4}, {IMG_U + ks*4096}\nbuffer_load_dwordx4 v{vW1}, {sr(S_WU,4)}, s{sA+3} offen lds")
        I(f"s_add_u32 s{sA+3}, s{sA+3}, {'s21' if ks % 4 == 3 else 's3'}")
    W1AT = cfg.get('w1_at', {'start': 2, 'tabA': 2, 'abar': 2, 'adone': 2, 'x1ld': 2, 'bbar': 2, 'bdone': 2, 'x2ld': 2})
    assert sum(W1AT.values()) == 16
    def w1_point(name):
        for _ in range(W1AT.get(name, 0)): w1_pair()
    w1_point('start')
    stamp('_w1b')
    srd(S_WR, 6, 2048*514); srd(S_WI, 8, 2048*514)
    WSP = V.get(8); vWG = V.get()
    I(f"v_lshrrev_b32 v{t0}, 2, v{vL}\nv_mul_u32_u24 v{t0}, 4112, v{t0}\nv_and_b32 v{t1}, 3, v{vL}\nv_lshl_add_u32 v{vWG}, v{t1}, 4, v{t0}")
    I(f"s_or_b32 s{sA+2}, s{sM}, s{sW}")
    def w_gather():
        I(f"s_lshr_b32 s{sT}, s{sM}, 3\ns_lshl_b32 s{sT}, s{sT}, 2\ns_and_b32 s58, s{sM}, 7\ns_lshl_b32 s58, s58, 6\ns_add_u32 s{sT}, s{sT}, s58\ns_mul_i32 s58, s{sW}, {64*4112}\ns_add_u32 s{sT}, s{sT}, s58")
        I(f"s_mul_i32 s58, s{sG}, 514\ns_add_u32 s{sT}, s{sT}, s58")
        for i in range(4):
            I(f"s_add_u32 m0, s{sA+4}, {SCR_W + 256*i}\nbuffer_load_dword v{vWG}, {sr(S_WR,4)}, s{sT} offen lds")
            I(f"s_add_u32 m0, s{sA+4}, {SCR_W + 4096 + 256*i}\nbuffer_load_dword v{vWG}, {sr(S_WI,4)}, s{sT} offen lds")
            if i < 3: I(f"s_add_u32 s{sT}, s{sT}, {16*4112}")
        I(f"s_cmp_lg_u32 s{sA+2}, 0\ns_cbranch_scc1 L_nosp")
        I(f"v_mul_u32_u24 v{t1}, 4112, v{vN}\nv_mul_u32_u24 v{t3}, {64*4112}, v{vQ}\nv_add_u32 v{vWG}, v{t1}, v{t3}")
        for i in range(4):
            I(f"buffer_load_ushort v{WSP+i}, v{vWG}, {sr(S_WR,4)}, s58 offen offset:512", track=False)
            I(f"buffer_load_ushort v{WSP+4+i}, v{vWG}, {sr(S_WI,4)}, s58 offen offset:512", track=False)
            I(f"s_add_u32 s58, s58, {16*4112}")
        a.label("L_nosp")
    WGAT = cfg.get('wg_at', 'xarr')
    vR, vC = V.get(), V.get()
    EA = V.get(16, 4)
    GA = V.get(64, 4)
    fq, fn = V.get(), V.get()
    I(f"v_cvt_f32_u32 v{fq}, v{vQ}\nv_cvt_f32_u32 v{fn}, v{vN}")
    vSGN_ODD = V.get()
    I(f"v_and_b32 v{t0}, 1, v{vN}\nv_mul_u32_u24 v{t0}, 0x8000, v{t0}\nv_lshl_or_b32 v{vSGN_ODD}, v{t0}, 16, v{t0}")
    T = V.get(16, 4)
    I(f"v_lshrrev_b32 v{t0}, 1, v{vN}\nv_mul_u32_u24 v{t1}, v{t0}, v{vQ}\nv_and_b32 v{t3}, 1, v{vN}\nv_lshl_add_u32 v{t1}, v{t3}, 1, v{t1}\nv_cvt_f32_u32 v{t1}, v{t1}\nv_mul_f32 v{t1}, 0.125, v{t1}".replace("0.125", fhex(0.125)))
    I(f"v_and_b32 v{t0}, 1, v{t0}\nv_mul_u32_u24 v{t0}, 0x8000, v{t0}\nv_lshl_or_b32 v{t0}, v{t0}, 16, v{t0}")
    I(f"v_cvt_f32_u32 v{t3}, v{t2}\nv_mul_f32 v{t3}, {fhex(0.25)}, v{t3}")
    for cb in range(2):
        if cb: I(f"v_add_f32 v{t3}, {fhex(0.125)}, v{t3}")
        I(f"v_add_f32 v{T+1}, v{t1}, v{t3}\nv_add_f32 v{T+2}, v{T+1}, v{t3}\nv_add_f32 v{T+3}, v{T+2}, v{t3}")
        I(f"v_cos_f32 v{T}, v{t1}\nv_cos_f32 v{T+1}, v{T+1}\nv_cos_f32 v{T+2}, v{T+2}\nv_cos_f32 v{T+3}, v{T+3}")
        e = EA + 8*cb
        I(f"v_cvt_pk_f16_f32 v{e}, v{T}, v{T+1}\nv_cvt_pk_f16_f32 v{e+1}, v{T+2}, v{T+3}")
        if cb: I(f"v_xor_b32 v{e+2}, 0x80008000, v{e}\nv_xor_b32 v{e+3}, 0x80008000, v{e+1}")
        else: I(f"v_mov_b32 v{e+2}, v{e}\nv_mov_b32 v{e+3}, v{e+1}")
        for i in range(4): I(f"v_xor_b32 v{e+4+i}, v{t0}, v{e+i}")
    def recur(nch, kf, a0, nsteps, scale, dst, cvt, fix=None):
        TW = V.get(2*nch, 2); P = V.get(4*nch, 2)
        for ch in range(nch):
            p = P + 4*ch
            I(f"v_add_f32 v{p+3}, v{a0[ch]}, v{kf[ch]}\nv_cos_f32 v{TW+2*ch}, v{kf[ch]}\nv_cos_f32 v{p}, v{a0[ch]}\nv_sin_f32 v{p+1}, v{a0[ch]}\nv_cos_f32 v{p+2}, v{p+3}\nv_sin_f32 v{p+3}, v{p+3}")
        I(f"s_mov_b32 s58, {fhex(scale)}")
        for ch in range(nch):
            p = P + 4*ch
            I(f"v_add_f32 v{TW+2*ch}, v{TW+2*ch}, v{TW+2*ch}")
            I(f"v_pk_mul_f32 {vr(p,2)}, {vr(p,2)}, s[58:59] op_sel_hi:[1,0]\nv_pk_mul_f32 {vr(p+2,2)}, {vr(p+2,2)}, s[58:59] op_sel_hi:[1,0]")
        for jp in range(nsteps//2):
            for ch in range(nch):
                p = P + 4*ch; rc, rs = dst(ch, jp)
                if fix and jp == 0 and fix(ch) is not None:
                    I(f"v_mul_f32 v{rc}, v{p}, v{fix(ch)}\n{cvt} v{rc}, v{rc}, v{p+2}")
                else: I(f"{cvt} v{rc}, v{p}, v{p+2}")
                I(f"{cvt} v{rs}, v{p+1}, v{p+3}")
            if jp + 1 < nsteps//2:
                for o in (0, 2):
                    for ch in range(nch):
                        p = P + 4*ch
                        I(f"v_pk_fma_f32 {vr(p+o,2)}, {vr(p+2-o,2)}, {vr(TW+2*ch,2)}, {vr(p+o,2)} op_sel_hi:[1,0,1] neg_lo:[0,0,1] neg_hi:[0,0,1]")
        V.put(TW, 2*nch); V.put(P, 4*nch)
    I(f"v_lshlrev_b32 v{t0}, 4, v{vN}\nv_lshl_add_u32 v{t0}, v{t2}, 1, v{t0}\nv_mul_f32 v{t3}, {fhex(16.0)}, v{fq}")
    for u in range(4):
        if u == 0:
            I(f"v_mov_b32 v{T}, 0x100\nv_cmp_eq_u32 vcc, 0, v{t0}\nv_cndmask_b32 v{T}, v{t0}, v{T}, vcc")
        else: I(f"v_add_u32 v{T+u}, {(u&1) + 8*(u>>1)}, v{t0}")
        I(f"v_cvt_f32_u32 v{T+u}, v{T+u}\nv_mul_f32 v{T+u}, {fhex(1/512)}, v{T+u}\nv_mul_f32 v{T+4+u}, v{T+u}, v{t3}")
    recur(4, [T+u for u in range(4)], [T+4+u for u in range(4)], 16, 0.125,
          lambda u, jp: (GA + 16*u + 8*(jp//4) + jp % 4, GA + 16*u + 8*(jp//4) + 4 + jp % 4), "v_cvt_pk_f16_f32")
    w1_point('tabA')
    vAW = V.get(2, 1); vAR = V.get(4, 1)
    I(f"v_lshrrev_b32 v{t0}, 5, v0\nv_and_b32 v{t1}, 31, v0\nv_lshlrev_b32 v{t1}, 4, v{t1}\nv_lshl_add_u32 v{t1}, v{t0}, 10, v{t1}")
    vXW = V.get()
    I(f"v_add_u32 v{vXW}, {SCR_X}, v{t1}")
    I(f"v_and_b32 v{t0}, 1, v{t0}\nv_lshlrev_b32 v{t0}, 3, v{t0}\nv_and_or_b32 v{t0}, v0, 16, v{t0}\nv_xor_b32 v{t1}, v{t0}, v{t1}\nv_add_u32 v{vAW}, {SCR_A}, v{t1}\nv_xor_b32 v{vAW+1}, 8, v{vAW}")
    I(f"v_lshrrev_b32 v{vR}, 2, v{vN}\nv_and_b32 v{vC}, 3, v{vN}")
    I(f"v_lshlrev_b32 v{t0}, 10, v{vQ}\nv_lshl_add_u32 v{t0}, v{vR}, 7, v{t0}\nv_lshl_add_u32 v{t0}, v{vC}, 5, v{t0}")
    I(f"v_and_b32 v{t1}, 1, v{vQ}\nv_and_or_b32 v{t1}, v{vR}, 2, v{t1}\nv_lshl_add_u32 v{t0}, v{t1}, 3, v{t0}\nv_add_u32 v{vAR}, {SCR_A}, v{t0}")
    for tp in range(1, 4): I(f"v_xor_b32 v{vAR+tp}, {8*tp}, v{vAR}")
    I(f"s_add_u32 s{sTAG}, s{sTAG}, 0x7f4a7c15\ns_addc_u32 s{sTAG+1}, s{sTAG+1}, 0x9e3779b9")
    I(f"v_mov_b32 v{FLG}, s{sTAG}\nv_mov_b32 v{FLG+1}, s{sTAG+1}\nv_mov_b32 v{FLG+2}, s{sXCC}\nv_mov_b32 v{FLG+3}, 0")
    I(f"s_lshl_b32 s{sT}, s{sPOS}, 7\ns_lshl_b32 s58, s{sW}, 4\ns_add_u32 s{sT}, s{sT}, s58\ns_add_u32 s{sA+5}, s{sT}, {FL0}")
    stamp("tabA")
    XF = V.get(16, 4)
    def unpack(dst, src, n):
        for i in range(n):
            I(f"v_lshlrev_b32 v{dst+2*i}, 16, v{src+i}\nv_and_b32 v{dst+2*i+1}, 0xffff0000, v{src+i}")
    a.need(vr(XR, 8))
    stamp("xarr")
    if WGAT == 'xarr': w_gather()
    w1_point('xarr')
    unpack(XF, XR, 8)
    def stats(X, wide, extra_scale):
        S, Q2 = T, T + 4
        I(f"v_pk_add_f32 {vr(S,2)}, {vr(X,2)}, {vr(X+2,2)}\nv_pk_add_f32 {vr(S+2,2)}, {vr(X+4,2)}, {vr(X+6,2)}")
        I(f"v_pk_mul_f32 {vr(Q2,2)}, {vr(X,2)}, {vr(X,2)}\nv_pk_mul_f32 {vr(Q2+2,2)}, {vr(X+2,2)}, {vr(X+2,2)}")
        for i in range(4, 16, 2):
            o = (i//2 % 2)*2
            if i >= 8: I(f"v_pk_add_f32 {vr(S+o,2)}, {vr(S+o,2)}, {vr(X+i,2)}")
            I(f"v_pk_fma_f32 {vr(Q2+o,2)}, {vr(X+i,2)}, {vr(X+i,2)}, {vr(Q2+o,2)}")
        I(f"v_pk_add_f32 {vr(S,2)}, {vr(S,2)}, {vr(S+2,2)}\nv_pk_add_f32 {vr(Q2,2)}, {vr(Q2,2)}, {vr(Q2+2,2)}")
        I(f"v_add_f32 v{S}, v{S}, v{S+1}\nv_add_f32 v{Q2}, v{Q2}, v{Q2+1}")
        dp = "row_mask:0xf bank_mask:0xf"
        if not wide:
            I(f"v_permlane16_swap_b32 v{S}, v{Q2}\nv_add_f32 v{S}, v{S}, v{Q2}")
            for d in ("quad_perm:[1,0,3,2]", "quad_perm:[2,3,0,1]", "row_half_mirror", "row_mirror"):
                I(f"v_add_f32_dpp v{S}, v{S}, v{S} {d} {dp}")
            I(f"v_mov_b32 v{Q2}, v{S}\nv_permlane16_swap_b32 v{S}, v{Q2}")
        else:
            I(f"v_permlane32_swap_b32 v{S}, v{Q2}\nv_add_f32 v{S}, v{S}, v{Q2}")
            for d in ("quad_perm:[2,3,0,1]", "row_ror:4", "row_ror:8"):
                I(f"v_add_f32_dpp v{S}, v{S}, v{S} {d} {dp}")
            I(f"v_mov_b32 v{Q2}, v{S}\nv_permlane16_swap_b32 v{S}, v{Q2}\nv_add_f32 v{S}, v{S}, v{Q2}")
            I(f"v_mov_b32 v{Q2}, v{S}\nv_permlane32_swap_b32 v{S}, v{Q2}")
        I(f"v_mul_f32 v{S}, {fhex(1/512)}, v{S}\nv_mul_f32 v{Q2}, {fhex(1/512)}, v{Q2}\nv_fma_f32 v{Q2}, -v{S}, v{S}, v{Q2}")
        I(f"v_max_f32 v{Q2}, 0, v{Q2}\nv_add_f32 v{Q2}, {fhex(1e-5)}, v{Q2}\nv_rsq_f32 v{Q2}, v{Q2}\nv_mul_f32 v{Q2}, {fhex(extra_scale)}, v{Q2}\nv_mul_f32 v{S}, v{S}, v{Q2}")
        return Q2, S
    R_, B_ = stats(XF, False, 0.125)
    a.wait_tok(tok_clr)
    I(f"s_mov_b64 exec, 1\nbuffer_store_dwordx4 {vr(FLG,4)}, off, {sr(S_WS,4)}, s{sA+5} sc1\ns_mov_b64 exec, -1")
    XN = V.get(8, 4)
    for i in range(8):
        I(f"v_pk_fma_f32 {vr(XF+2*i,2)}, {vr(XF+2*i,2)}, {vr(R_,2)}, {vr(B_,2)} op_sel_hi:[1,0,0] neg_lo:[0,0,1] neg_hi:[0,0,1]")
    for i in (0, 1, 4, 5, 2, 3, 6, 7):
        I(f"v_cvt_pk_f16_f32 v{XN+i}, v{XF+2*i}, v{XF+2*i+1}")
        if i == 5: I(f"ds_write2_b64 v{vAW}, {vr(XN,2)}, {vr(XN+4,2)} offset0:0 offset1:64")
    I(f"ds_write2_b64 v{vAW+1}, {vr(XN+2,2)}, {vr(XN+6,2)} offset0:0 offset1:64")
    a.wait_lg0(); I("s_barrier")
    V.put(XN, 8); V.put(XF, 16); V.put(ONES, 4)
    AF = V.get(32, 4)
    for tp in range(4):
        for ks in range(2):
            for hh in range(2):
                I(f"ds_read_b64_tr_b16 {vr(AF+8*tp+4*ks+2*hh,2)}, v{vAR+tp} offset:{ks*4096+hh*512}")
    if WGAT == 'abar': w_gather()
    w1_point('abar')
    D1 = V.get(32, 4)
    for tp in range(4):
        for ks in range(2):
            for cb in range(2):
                d = D1 + 16*cb + 4*tp
                I(f"v_mfma_f32_16x16x32_f16 {vr(d,4)}, {vr(AF+8*tp+4*ks,4)}, {vr(EA+8*cb+4*ks,4)}, {vr(d,4) if ks else 0}")
    Y1, Y2 = AF, AF + 16
    D2 = T
    for ks2 in range(2):
        for cb in range(2):
            for e in range(4):
                d = D1 + 16*cb + 8*ks2 + 2*e
                I(f"v_cvt_pk_f16_f32 v{Y1+8*cb+4*ks2+e}, v{d}, v{d+1}")
        for u in range(4):
            I(f"v_mfma_f32_16x16x32_f16 {vr(D2+4*u,4)}, {vr(Y1+8*(u&1)+4*ks2,4)}, {vr(GA+16*u+8*ks2,4)}, {vr(D2+4*u,4) if ks2 else 0}")
            for e in range(2):
                x = 8*((u>>1)) + 4*ks2 + 2*(u&1) + e
                I(f"v_xor_b32_dpp v{Y2+x}, v{Y1+x}, v{vSGN_ODD} quad_perm:[1,0,3,2] row_mask:0xf bank_mask:0xf")
        for u in range(4):
            I(f"v_mfma_f32_16x16x32_f16 {vr(D2+4*u,4)}, {vr(Y2+8*(u&1)+4*ks2,4)}, {vr(GA+16*u+8*ks2+4,4)}, {vr(D2+4*u,4)}")
    O = D1
    for u in range(4):
        for b in range(2):
            I(f"v_cvt_pk_f16_f32 v{O+4*b+u}, v{D2+4*u+2*b}, v{D2+4*u+2*b+1}")
        for b in range(2):
            I(f"v_min_u32 v{O+4*b+u}, -2, v{O+4*b+u}")
    I(f"buffer_store_dwordx4 {vr(O,4)}, v{vX1S}, {sr(S_WS,4)}, s{sA} offen sc1")
    I(f"buffer_store_dwordx4 {vr(O+4,4)}, v{vX1S}, {sr(S_WS,4)}, s63 offen sc1")
    stamp("Adone")
    V.put(EA, 16); V.put(GA, 64); V.put(AF, 32); V.put(vAW, 2); V.put(vAR, 4); V.put(vX1S)
    vX1L = V.get()
    I(f"v_lshrrev_b32 v{t0}, 7, v0\nv_bfe_u32 v{t1}, v0, 1, 2\nv_lshlrev_b32 v{t1}, 4, v{t1}\nv_lshl_add_u32 v{t0}, v{t0}, 6, v{t1}\nv_bfe_u32 v{t1}, v0, 3, 4\nv_add_u32 v{t0}, v{t0}, v{t1}")
    I(f"v_lshlrev_b32 v{vFL}, 7, v{t0}\nv_and_b32 v{t1}, 1, v0\nv_lshlrev_b32 v{t1}, 4, v{t1}\nv_lshl_add_u32 v{vX1L}, v{t0}, 10, v{t1}")
    I(f"s_lshr_b32 s{sT}, s{sM}, 3\ns_lshl_b32 s{sT}, s{sT}, 4\ns_add_u32 s{sA+5}, s{sT}, {FL0}\ns_add_u32 s62, s{sA+5}, {128*128}")
    flag_loads = [f"buffer_load_dwordx2 {vr(FV,2)}, v{vFL}, {sr(S_WS,4)}, s{sA+5} offen sc1", f"buffer_load_dwordx2 {vr(FV+2,2)}, v{vFL}, {sr(S_WS,4)}, s62 offen sc1"]
    for t in flag_loads: tok_ack1 = I(t)
    if WGAT == 'adone':
        w_gather(); tok_ack1 = a.ntok_last_vm()
    w1_point('adone')
    V.put(D1, 32)
    HX = V.get(16, 4)
    I(f"ds_write_b128 v{vXW}, {vr(XR,4)}\nds_write_b128 v{vXW}, {vr(XR+4,4)} offset:512")
    I(f"v_and_b32 v{t0}, 1, v{vN}\nv_lshl_add_u32 v{t0}, v{t2}, 1, v{t0}\nv_lshlrev_b32 v{t0}, 10, v{t0}\nv_lshrrev_b32 v{t1}, 1, v{vN}\nv_lshl_add_u32 v{t0}, v{t1}, 7, v{t0}\nv_lshl_add_u32 v{t0}, v{vQ}, 4, v{t0}\nv_add_u32 v{t0}, {SCR_X}, v{t0}")
    I(f"ds_read_b128 {vr(XR,4)}, v{t0}\nds_read_b128 {vr(XR+4,4)}, v{t0} offset:64")
    V.put(vXW)
    MB = V.get(32, 4)
    TW1, TW2 = V.get(8, 2), V.get(8, 2)
    WF = V.get(16, 2)
    fp1 = V.get()
    I(f"v_cvt_f32_u32 v{fp1}, s{sG}")
    for i in range(4): I(f"v_fma_f32 v{T+i}, v{fq}, 4.0, {['0','1.0','2.0','2.0'][i]}")
    I(f"v_add_f32 v{T+3}, 1.0, v{T+3}\nv_mul_f32 v{t0}, {fhex(8.0)}, v{fn}\nv_add_f32 v{t0}, v{t0}, v{fp1}")
    def cs(ang, scale=None):
        for i in range(4): I(f"v_cos_f32 v{T+8+i}, v{ang+i}\nv_sin_f32 v{T+12+i}, v{ang+i}")
        if scale:
            for i in range(8): I(f"v_mul_f32 v{T+8+i}, {fhex(scale)}, v{T+8+i}")
    def frag(st, cvt, fwd):
        for i in range(4):
            c, s = f"v{T+8+i}", f"v{T+12+i}"
            if fwd: I(f"{cvt} v{MB+8*st+i}, {c}, {s}\n{cvt} v{MB+8*st+4+i}, -{s}, {c}")
            else: I(f"{cvt} v{MB+8*st+i}, {c}, -{s}\n{cvt} v{MB+8*st+4+i}, {s}, {c}")
    I(f"v_mul_f32 v{t1}, {fhex(1/128)}, v{t0}")
    for i in range(4): I(f"v_mul_f32 v{T+4+i}, v{T+i}, v{t1}")
    cs(T+4, 0.25); frag(0, "v_cvt_pk_f16_f32", True)
    for i in range(4):
        I(f"v_mul_f32 v{T+4+i}, {fhex(-1/16)}, v{T+4+i}")
    for i in range(4): I(f"v_cos_f32 v{TW1+i}, v{T+4+i}\nv_sin_f32 v{TW1+4+i}, v{T+4+i}")
    I(f"v_mul_f32 v{t1}, {fhex(1/16)}, v{fn}")
    for i in range(4): I(f"v_mul_f32 v{T+4+i}, v{T+i}, v{t1}")
    cs(T+4); frag(1, "v_cvt_pk_f16_f32", True); frag(2, "v_cvt_pk_bf16_f32", False)
    I(f"v_mul_f32 v{t1}, {fhex(1/128)}, v{fn}\ns_mov_b32 s58, {fhex(8.0)}")
    for i in range(4): I(f"v_fma_f32 v{T+4+i}, v{T+i}, s58, v{fp1}\nv_mul_f32 v{T+4+i}, v{T+4+i}, v{t1}")
    cs(T+4); frag(3, "v_cvt_pk_bf16_f32", False)
    for i in range(4): I(f"v_mul_f32 v{T+4+i}, {fhex(1/16)}, v{T+4+i}")
    for i in range(4): I(f"v_cos_f32 v{TW2+i}, v{T+4+i}\nv_sin_f32 v{TW2+4+i}, v{T+4+i}")
    V.put(fp1)
    unpack(HX, XR, 8); V.put(XR, 8)
    vBW, vBR, vOW, vOR = V.get(), V.get(), V.get(), V.get()
    I(f"v_and_b32 v{t0}, 1, v0\nv_mul_u32_u24 v{t0}, 4160, v{t0}\nv_lshrrev_b32 v{t1}, 1, v0\nv_lshl_add_u32 v{t0}, v{t1}, 2, v{t0}\nv_add_u32 v{vBW}, {SCR_BI}, v{t0}\nv_add_u32 v{vOR}, {SCR_BO}, v{t0}")
    I(f"v_lshlrev_b32 v{t0}, 4, v{vL}\nv_lshl_add_u32 v{t1}, v{t2}, 11, v{t0}\nv_lshrrev_b32 v{t3}, 1, v{t2}\nv_lshl_add_u32 v{t1}, v{t3}, 6, v{t1}\nv_add_u32 v{vBR}, {SCR_BI}, v{t1}")
    I(f"v_lshl_add_u32 v{t0}, v{t2}, 10, v{t0}\nv_add_u32 v{vOW}, {SCR_BO}, v{t0}")
    I(f"s_lshl_b32 s{sT}, s{sG}, 18\ns_lshl_b32 s58, s{sM}, 5\ns_add_u32 s{sA}, s{sT}, s58\ns_add_u32 s63, s{sA}, 0x20000")
    stamp("tabB")
    a.wait_tok(tok_ack1); a.wait_lg0()
    stamp("ack1")
    I("s_barrier")
    a.label("L_f0")
    I(f"v_cmp_ne_u64 vcc, s[{sTAG}:{sTAG+1}], {vr(FV,2)}\nv_cmp_ne_u64 s[58:59], s[{sTAG}:{sTAG+1}], {vr(FV+2,2)}\ns_or_b64 vcc, vcc, s[58:59]\ns_cbranch_vccz L_f0ok")
    spin_check()
    for t in flag_loads: I(t, track=False)
    I("s_waitcnt vmcnt(0)\ns_branch L_f0")
    a.label("L_f0ok")
    IN = V.get(8, 4)
    def poll(name, loads, fill=None):
        for t in loads: I(t)
        w1_point(name + 'ld')
        if fill: fill()
        a.need(vr(IN, 8))
        a.label(f"L_{name}")
        I(f"v_max3_u32 v{t0}, v{IN}, v{IN+1}, v{IN+2}\nv_max3_u32 v{t1}, v{IN+3}, v{IN+4}, v{IN+5}\nv_max3_u32 v{t0}, v{t0}, v{IN+6}, v{IN+7}\nv_max_u32 v{t0}, v{t0}, v{t1}")
        I(f"v_cmp_eq_u32 vcc, -1, v{t0}\ns_cbranch_vccz L_{name}ok")
        spin_check()
        for t in loads: I(t, track=False)
        I(f"s_waitcnt vmcnt(0)\ns_branch L_{name}")
        a.label(f"L_{name}ok")
    EC = V.get(16, 4); GC = V.get(64, 4)
    def fill1():
        WRAW = T + 8
        I(f"v_lshlrev_b32 v{t0}, 10, v{vQ}\nv_lshl_add_u32 v{t0}, v{vN}, 4, v{t0}\nv_lshl_add_u32 v{t0}, v{t2}, 2, v{t0}\nv_add_u32 v{t0}, {SCR_W}, v{t0}")
        for ri in range(2):
            for e in range(2): I(f"ds_read2st64_b32 {vr(WRAW+4*ri+2*e,2)}, v{t0} offset0:{16*ri+2*e} offset1:{16*ri+2*e+1}")
        for ri in range(2):
            for i in range(4):
                I(f"v_lshlrev_b32 v{WF+4*ri+i}, 16, v{WRAW+4*ri+i}\nv_and_b32 v{WF+8+4*ri+i}, 0xffff0000, v{WRAW+4*ri+i}")
        I(f"s_cmp_lg_u32 s{sA+2}, 0\ns_cbranch_scc1 L_nosp2")
        for i in range(8): I(f"v_lshlrev_b32 v{WF+i}, 16, v{WSP+i}")
        a.label("L_nosp2")
        I(f"v_and_b32 v{t0}, 1, v{vN}\nv_lshl_add_u32 v{t0}, v{t2}, 1, v{t0}\nv_cvt_f32_u32 v{t0}, v{t0}\nv_mul_f32 v{t0}, {fhex(0.125)}, v{t0}")
        I(f"v_lshrrev_b32 v{t1}, 1, v{vN}\nv_and_b32 v{t3}, 1, v{t1}\nv_mul_u32_u24 v{t3}, 0x8000, v{t3}\nv_lshl_or_b32 v{t3}, v{t3}, 16, v{t3}\nv_cvt_f32_u32 v{t1}, v{t1}\nv_mul_f32 v{t1}, {fhex(0.125)}, v{t1}")
        I(f"v_mul_f32 v{T}, v{fq}, v{t0}\nv_add_f32 v{T}, v{T}, v{T}\nv_add_f32 v{T+1}, v{T}, v{t0}")
        for c in range(4):
            if c: I(f"v_add_f32 v{T}, v{T}, v{t1}\nv_add_f32 v{T+1}, v{T+1}, v{t1}")
            I(f"v_cos_f32 v{T+2}, v{T}\nv_sin_f32 v{T+3}, v{T}\nv_cos_f32 v{T+4}, v{T+1}\nv_sin_f32 v{T+5}, v{T+1}")
            I(f"v_cvt_pk_bf16_f32 v{EC+2*c}, v{T+2}, -v{T+3}\nv_cvt_pk_bf16_f32 v{EC+2*c+1}, v{T+4}, -v{T+5}")
        for i in range(8): I(f"v_xor_b32 v{EC+8+i}, v{t3}, v{EC+i}")
    poll("x1", [f"buffer_load_dwordx4 {vr(IN,4)}, v{vX1L}, {sr(S_WS,4)}, s{sA} offen sc1", f"buffer_load_dwordx4 {vr(IN+4,4)}, v{vX1L}, {sr(S_WS,4)}, s63 offen sc1"], fill1)
    stamp("x1ok")
    V.put(WSP, 8); V.put(vWG); V.put(vX1L); V.put(PF, 2)
    for h2 in range(2):
        for e in range(2):
            I(f"ds_write2st64_b32 v{vBW}, v{IN+4*h2+2*e}, v{IN+4*h2+2*e+1} offset0:{2*h2+8*e} offset1:{2*h2+8*e+4}")
    a.wait_lg0(); I("s_barrier")
    I(f"ds_read_b128 {vr(IN,4)}, v{vBR}\nds_read_b128 {vr(IN+4,4)}, v{vBR} offset:1024")
    I(f"v_and_b32 v{vFL}, 31, v{vL}\nv_lshlrev_b32 v{vFL}, 7, v{vFL}\ns_lshl_b32 s{sT}, s{sG}, 12\ns_add_u32 s{sT}, s{sT}, s{sA+5}")
    I(f"buffer_load_dword v{FV}, v{vFL}, {sr(S_WS,4)}, s{sT} offen offset:8 sc1")
    I(f"s_lshl_b32 s{sT}, s{sG}, 10\ns_add_u32 s{sT}, s{sT}, {FL3}\nbuffer_load_dword v{FV+1}, v{vL16}, {sr(S_WS,4)}, s{sT} offen sc1")
    w1_point('bbar')
    DB = V.get(16, 4)
    def bstage(st, op, data_is_a):
        for col in range(2):
            for ri in range(2):
                x, m = vr(IN+4*col, 4), vr(MB+8*st+4*ri, 4)
                I(f"{op} {vr(DB+8*col+4*ri,4)}, {x if data_is_a else m}, {m if data_is_a else x}, 0")
    def cmul(tw, cvt):
        for col in range(2):
            c, s = tw(col); R, J = DB + 8*col, DB + 8*col + 4; o = T + 8*col
            for e in (0, 2): I(f"v_pk_mul_f32 {vr(o+e,2)}, {vr(R+e,2)}, {vr(c+e,2)}\nv_pk_mul_f32 {vr(o+4+e,2)}, {vr(R+e,2)}, {vr(s+e,2)}")
            for e in (0, 2): I(f"v_pk_fma_f32 {vr(o+e,2)}, {vr(J+e,2)}, {vr(s+e,2)}, {vr(o+e,2)} neg_lo:[1,0,0] neg_hi:[1,0,0]\nv_pk_fma_f32 {vr(o+4+e,2)}, {vr(J+e,2)}, {vr(c+e,2)}, {vr(o+4+e,2)}")
        for col in range(2):
            o = T + 8*col
            for i in range(4): I(f"{cvt} v{IN+4*col+i}, v{o+i}, v{o+4+i}")
    bstage(0, "v_mfma_f32_16x16x32_f16", True); cmul(lambda c: (TW1, TW1+4), "v_cvt_pk_f16_f32")
    bstage(1, "v_mfma_f32_16x16x32_f16", False); cmul(lambda c: (WF+8*c, WF+8*c+4), "v_cvt_pk_bf16_f32")
    bstage(2, "v_mfma_f32_16x16x32_bf16", True); cmul(lambda c: (TW2, TW2+4), "v_cvt_pk_bf16_f32")
    bstage(3, "v_mfma_f32_16x16x32_bf16", True)
    for ri in range(2):
        for i in range(4): I(f"v_cvt_pk_bf16_f32 v{T+4*ri+i}, v{DB+4*ri+i}, v{DB+8+4*ri+i}")
        for i in range(4): I(f"v_min_u32 v{T+4*ri+i}, -2, v{T+4*ri+i}")
        I(f"ds_write_b128 v{vOW}, {vr(T+4*ri,4)} offset:{4160*ri}")
    a.wait_lg0(); I("s_barrier")
    for h2 in range(2):
        for e in range(2):
            I(f"ds_read2st64_b32 {vr(DB+4*h2+2*e,2)}, v{vOR} offset0:{2*h2+8*e} offset1:{2*h2+8*e+4}")
    for h2 in range(2):
        tok_ack2 = I(f"buffer_store_dwordx4 {vr(DB+4*h2,4)}, v{vX2S}, {sr(S_WS,4)}, s{sA+1} offen offset:{256*h2} sc1")
    stamp("Bdone")
    w1_point('bdone')
    V.put(MB, 32); V.put(TW1, 8); V.put(TW2, 8); V.put(WF, 16); V.put(vBW); V.put(vBR); V.put(vOW); V.put(vOR); V.put(vX2S)
    I(f"s_or_b32 s{sT}, s2, s{sW}\ns_cmp_lg_u32 s{sT}, 0\ns_cbranch_scc1 L_nogen")
    I(f"s_mov_b32 s{sT}, {GEN}\ns_mov_b64 exec, 1")
    I(f"buffer_store_dwordx2 {vr(FLG,2)}, off, {sr(S_WS,4)}, s{sT} sc1", track=False)
    I("s_mov_b64 exec, -1")
    a.label("L_nogen")
    KF, A0 = V.get(4, 1), V.get(8, 1); FIX = V.get()
    I(f"v_lshl_add_u32 v{t0}, v{vR}, 3, v{vC}\nv_cvt_f32_u32 v{t0}, v{t0}")
    I(f"v_lshlrev_b32 v{t1}, 6, v{vQ}\nv_lshl_add_u32 v{t1}, v{t2}, 1, v{t1}\nv_cmp_eq_u32 vcc, 0, v{t1}\nv_cvt_f32_u32 v{t1}, v{t1}")
    I(f"v_mov_b32 v{FIX}, 0.5\nv_and_b32 v{t3}, 0x80000000, v{vSGN_ODD}\nv_xor_b32 v{FIX}, v{t3}, v{FIX}\nv_cndmask_b32 v{FIX}, 1.0, v{FIX}, vcc")
    for t in range(4):
        I(f"v_add_f32 v{t3}, {fhex(32.0*(t>>1)+4.0*(t&1))}, v{t0}\nv_mul_f32 v{t3}, {fhex(1/512)}, v{t3}\nv_mul_f32 v{KF+t}, {fhex(8.0)}, v{t3}")
        I(f"v_mul_f32 v{A0+2*t}, v{t3}, v{t1}\nv_add_f32 v{A0+2*t+1}, v{A0+2*t}, v{t3}")
    def ctab(half):
        chs = [(t, cb) for t in (2*half, 2*half+1) for cb in range(2)]
        recur(4, [KF+t for t, cb in chs], [A0+2*t+cb for t, cb in chs], 8, 2.0**-11,
              lambda ch, jp: (GC + 16*chs[ch][0] + 8*chs[ch][1] + jp, GC + 16*chs[ch][0] + 8*chs[ch][1] + 4 + jp), "v_cvt_pk_bf16_f32",
              fix=lambda ch: FIX if chs[ch][1] == 0 else None)
    ctab(0)
    vX2L, vCW, vCR, vHS = V.get(), V.get(), V.get(), V.get()
    I(f"v_lshrrev_b32 v{t0}, 1, v{vN}\nv_lshlrev_b32 v{t0}, 4, v{t0}\nv_lshl_add_u32 v{t0}, v{t2}, 2, v{t0}\nv_add_u32 v{t0}, v{t0}, v{vQ}\nv_and_b32 v{t1}, 1, v{vN}\nv_lshlrev_b32 v{t1}, 4, v{t1}\nv_lshl_add_u32 v{vX2L}, v{t0}, 11, v{t1}")
    I(f"s_lshl_b32 s{sT}, s{sG}, 20\ns_lshl_b32 s58, s{sM}, 5\ns_add_u32 s{sT}, s{sT}, s58\ns_add_u32 s{sA}, s{sT}, {GR}")
    a.wait_tok(tok_ack2)
    stamp("ack2")
    def fill2():
        I(f"v_cmp_ne_u32 vcc, s{sXCC}, v{FV}\ns_cmp_eq_u64 vcc, 0\ns_cselect_b32 s{sMODE}, {0 if cfg.get('force_slow') else 1}, 0")
        ctab(1)
        I(f"v_lshlrev_b32 v{t0}, 4, v{vL}\nv_add_u32 v{vCR}, {SCR_C}, v{t0}\nv_lshl_add_u32 v{vCW}, v{t2}, 12, v{vCR}")
        I(f"v_lshrrev_b32 v{t0}, 1, v{vN}\nv_lshlrev_b32 v{t0}, 11, v{t0}\nv_lshl_add_u32 v{t0}, v{vQ}, 8, v{t0}\nv_lshl_add_u32 v{t0}, v{t2}, 5, v{t0}\nv_and_b32 v{t1}, 1, v{vN}\nv_lshl_add_u32 v{vHS}, v{t1}, 4, v{t0}")
        I(f"v_xor_b32 v{vSGN_ODD}, 0x80008000, v{vSGN_ODD}")
        I(f"s_mov_b32 s60, 0x05040100\ns_mov_b32 s61, 0x07060302")
    poll("x2", [f"buffer_load_dwordx4 {vr(IN,4)}, v{vX2L}, {sr(S_WS,4)}, s{sA} offen sc1", f"buffer_load_dwordx4 {vr(IN+4,4)}, v{vX2L}, {sr(S_WS,4)}, s{sA} offen offset:1024 sc1"], fill2)
    stamp("x2ok")
    V.put(KF, 4); V.put(A0, 8); V.put(FIX); V.put(vX2L); V.put(fq); V.put(fn)
    FA = DB
    for cb in range(2):
        for e in range(4): I(f"v_perm_b32 v{FA+4*cb+e}, v{IN+2*e+1}, v{IN+2*e}, s{60+cb}")
    D1 = V.get(32, 4)
    k = 0
    for t in range(4):
        for cb in range(2):
            I(f"v_mfma_f32_16x16x32_bf16 {vr(D1+8*t+4*cb,4)}, {vr(FA+4*cb,4)}, {vr(GC+16*t+8*cb,4)}, 0")
            I(f"v_xor_b32_dpp v{FA+8+k}, v{FA+k}, v{vSGN_ODD} quad_perm:[1,0,3,2] row_mask:0xf bank_mask:0xf"); k += 1
    pend = []
    for t in range(4):
        for cb in range(2):
            I(f"v_mfma_f32_16x16x32_bf16 {vr(D1+8*t+4*cb,4)}, {vr(FA+8+4*cb,4)}, {vr(GC+16*t+8*cb+4,4)}, {vr(D1+8*t+4*cb,4)}")
    for t in range(4):
        for e in range(4): I(f"v_cvt_pk_bf16_f32 v{T+4*t+e}, v{D1+8*t+2*e}, v{D1+8*t+2*e+1}")
        I(f"ds_write_b128 v{vCW}, {vr(T+4*t,4)} offset:{1024*t}")
    a.wait_lg0(); I("s_barrier")
    ZF = GC
    for ks in range(4):
        for t in range(4): I(f"ds_read_b128 {vr(ZF+16*ks+4*t,4)}, v{vCR} offset:{4096*ks+1024*t}")
    w1_point('cbar')
    for ks in range(4):
        for t in range(4):
            I(f"v_mfma_f32_16x16x32_bf16 {vr(HX+4*t,4)}, {vr(ZF+16*ks+4*t,4)}, {vr(EC+4*ks,4)}, {vr(HX+4*t,4)}")
    I(f"s_lshl_b32 s{sT}, s{sG}, 18\ns_lshr_b32 s58, s{sM}, 1\ns_lshl_b32 s58, s58, 14\ns_add_u32 s{sT}, s{sT}, s58\ns_and_b32 s58, s{sM}, 1\ns_lshl_b32 s58, s58, 7\ns_add_u32 s{sT}, s{sT}, s58")
    I(f"s_add_u32 s{sA}, s{sT}, {HN}\ns_add_u32 s{sA+1}, s{sT}, {HR}")
    R_, B_ = stats(HX, True, BETA)
    for i in range(8):
        I(f"v_pk_fma_f32 {vr(D1+2*i,2)}, {vr(HX+2*i,2)}, {vr(R_,2)}, {vr(B_,2)} op_sel_hi:[1,0,0] neg_lo:[0,0,1] neg_hi:[0,0,1]")
    for i in range(8): I(f"v_cvt_pk_bf16_f32 v{D1+16+i}, v{D1+2*i}, v{D1+2*i+1}")
    modal([f"buffer_store_dwordx4 {vr(D1+16+4*h,4)}, v{vHS}, {sr(S_WS,4)}, s{sA} offen offset:{1024*h}" for h in range(2)])
    for i in range(8): I(f"v_cvt_pk_bf16_f32 v{D1+24+i}, v{HX+2*i}, v{HX+2*i+1}")
    modal([f"buffer_store_dwordx4 {vr(D1+24+4*h,4)}, v{vHS}, {sr(S_WS,4)}, s{sA+1} offen offset:{1024*h}" for h in range(2)])
    stamp("Cdone")
    w1_point('cdone')
    V.put(EC, 16); V.put(GC, 64); V.put(HX, 16); V.put(DB, 16); V.put(IN, 8); V.put(vCW); V.put(vCR); V.put(vHS); V.put(vSGN_ODD); V.put(T, 16)
    srd(S_WD, 16, 1792*1024); srd(S_OUT, 18, 2048*1024)
    I(f"v_lshlrev_b32 v{t0}, 2, v{vQ}\nv_add_u32 v{t0}, v{t0}, v{vR}\nv_bfe_u32 v{t1}, v{t0}, 1, 2\nv_lshlrev_b32 v{t0}, 7, v{t0}\nv_lshl_add_u32 v{t0}, v{t1}, 5, v{t0}\nv_lshl_add_u32 v{vG1}, v{vC}, 3, v{t0}")
    for ct in range(1, 4): I(f"v_xor_b32 v{vG1+ct}, {32*ct}, v{vG1}")
    I(f"s_lshl_b32 s63, s{sW}, 13\ns_add_u32 s63, s63, {STG}")
    for ct in range(4): I(f"v_add_u32 v{vG1+4+ct}, {IMG_U}, v{vG1+ct}\nv_add_u32 v{vS2+ct}, s63, v{vG1+ct}")
    V.put(vR); V.put(vC)
    I(f"s_mul_i32 s62, s{sW}, {448*1024}\ns_and_b32 s58, s{sM}, 7\ns_lshl_b32 s58, s58, 7\ns_add_u32 s62, s62, s58")
    I(f"s_lshl_b32 s{sT}, s{sPOS}, 5\ns_lshl_b32 s58, s{sW}, 3\ns_add_u32 s{sT}, s{sT}, s58\ns_add_u32 s{sT}, s{sT}, {FL3}")
    I(f"v_lshrrev_b32 v{vFL}, 4, v{vFL}")
    I(f"s_lshl_b32 s58, s{sG}, 10\ns_lshl_b32 s59, s{sW}, 8\ns_add_u32 s58, s58, s59\ns_add_u32 s{sA+5}, s58, {FL3}")
    I(f"s_lshl_b32 s58, s{sG}, 18\ns_lshl_b32 s59, s{sW}, 16\ns_add_u32 s{sA}, s58, s59")
    for rt in range(1, 4): I(f"s_add_u32 s{sA+rt}, s{sA}, {16384*rt}")
    a.wait_vm0()
    stamp("ack3")
    I("s_mov_b64 exec, 1")
    modal([f"buffer_store_dwordx2 {vr(FLG,2)}, off, {sr(S_WS,4)}, s{sT}"])
    I("s_mov_b64 exec, -1")
    V.put(D1, 32)
    def flagload(soff, track=True): return I(f"buffer_load_dwordx2 {vr(FV,2)}, v{vFL}, {sr(S_WS,4)}, {soff} offen sc1", track=track)
    def flagcheck(name, soff):
        a.need(vr(FV, 2))
        a.label(f"L_{name}")
        I(f"v_cmp_ne_u64 vcc, s[{sTAG}:{sTAG+1}], {vr(FV,2)}\ns_cbranch_vccz L_{name}ok")
        spin_check()
        flagload(soff, False)
        I(f"s_waitcnt vmcnt(0)\ns_branch L_{name}")
        a.label(f"L_{name}ok")
    flagload(f"s{sA+5}")
    sHS, sHL, sF4S, sF4L, sRES, sOUT = 28, 29, 30, 31, 32, 33
    I(f"s_lshl_b32 s58, s{sG}, 20\ns_add_u32 s58, s58, {GR}\ns_mul_i32 s59, s{sW}, 28\ns_add_u32 s59, s59, s{sM}\ns_lshl_b32 s59, s59, 12\ns_add_u32 s{sHS}, s58, s59")
    I(f"s_lshr_b32 s59, s{sM}, 3\ns_mul_i32 s59, s59, 28\ns_mul_i32 s60, s{sW}, 7\ns_add_u32 s59, s59, s60\ns_lshl_b32 s59, s59, 12\ns_add_u32 s{sHL}, s58, s59")
    I(f"s_lshl_b32 s58, s{sG}, 2\ns_add_u32 s58, s58, s{sW}\ns_lshl_b32 s58, s58, 5\ns_add_u32 s58, s58, s{sM}\ns_lshl_b32 s58, s58, 3\ns_add_u32 s{sF4S}, s58, {FL4}")
    I(f"s_lshr_b32 s58, s{sPOS}, 3\ns_lshl_b32 s59, s58, 5\ns_add_u32 s59, s59, s60\ns_lshl_b32 s59, s59, 3\ns_add_u32 s{sF4L}, s59, {FL4}")
    I(f"s_lshl_b32 s58, s58, 2\ns_add_u32 s58, s58, s{sW}\ns_and_b32 s59, s{sM}, 7")
    I(f"s_lshl_b32 s{sRES}, s58, 14\ns_lshl_b32 s61, s59, 11\ns_add_u32 s{sRES}, s{sRES}, s61\ns_add_u32 s{sRES}, s{sRES}, {HR}")
    I(f"s_lshl_b32 s{sOUT}, s58, 11\ns_lshl_b32 s61, s59, 7\ns_add_u32 s{sOUT}, s{sOUT}, s61")
    I(f"v_lshrrev_b32 v{t0}, 3, v{vL}\nv_and_b32 v{t1}, 7, v{vL}\nv_lshlrev_b32 v{t3}, 4, v{t0}\nv_lshl_add_u32 v{vW1}, v{t1}, 8, v{t3}")
    I(f"v_lshrrev_b32 v{t0}, 5, v{vL}\nv_mul_u32_u24 v{t0}, {448*1024}, v{t0}\nv_and_b32 v{t1}, 31, v{vL}\nv_lshl_add_u32 v{FV+2}, v{t1}, 7, v{t0}")
    flagcheck("f3", f"s{sA+5}")
    stamp("f3ok")
    I(f"v_min_u32 v{vFL}, 48, v{vFL}")
    ACC = V.get(128, 4); DEPTH = cfg.get('depth', 5); ACT = V.get(16*DEPTH, 4); WR_ = V.get(16, 4)
    def act_load(ks, rt):
        t = f"buffer_load_dwordx4 {vr(ACT+16*(ks%DEPTH)+4*rt,4)}, v{vL16}, {sr(S_WS,4)}, s{sA+rt} offen offset:{1024*(ks%4)} sc1"
        if ks % 4 == 3: t += f"\ns_add_u32 s{sA+rt}, s{sA+rt}, 4096"
        return t
    def w_read(n, hh):
        ks, j = divmod(n, 8)
        return f"ds_read_b64_tr_b16 {vr(WR_+4*(n%4)+2*hh,2)}, v{vG1+j} offset:{ks*4096+hh*2048}"
    def w2_dma(k2, ii):
        fr = 64*(k2 % 7) + 32*(k2//7) + 8*ii
        return (f"s_add_u32 s61, s62, {fr*1024}\ns_add_u32 m0, s63, {(k2%2)*4096+ii*1024}", f"buffer_load_dwordx4 v{vD2}, {sr(S_WD,4)}, s61 offen lds")
    def w2_read(k2, ct, hh):
        return f"ds_read_b64_tr_b16 {ar(16*k2+4*ct+2*hh,2)}, v{vS2+ct} offset:{(k2%2)*4096+hh*2048}"
    res_loads = [f"buffer_load_dwordx4 {ar(224+4*p,4)}, v{vW1}, {sr(S_WS,4)}, s{sRES} offen offset:{128*p} sc1" for p in range(2)]
    f4_touch = [f"buffer_load_dwordx2 {ar(234,2)}, v{vFL}, {sr(S_WS,4)}, s{sF4L} offen sc1", f"s_add_u32 s60, s{sF4L}, 0x2000\nbuffer_load_dwordx2 {ar(234,2)}, v{vFL}, {sr(S_WS,4)}, s60 offen sc1"]
    I(f"s_cmp_ge_u32 s{sM}, 28\ns_cbranch_scc1 L_touch")
    for ks in range(DEPTH-1):
        for rt in range(4): I(act_load(ks, rt))
    I("s_barrier")
    W2S = cfg.get('w2_start', 0); W2P = cfg.get('w2_period', 2)
    w2_issue = {k2: W2S + W2P*k2 for k2 in range(14)}
    w2_rd = {k2: w2_issue[k2] + 2*W2P - 1 for k2 in range(14)}
    w2tok = {}; w2rdtok = {}
    for n in range(3):
        for hh in range(2): I(w_read(n, hh))
    TOUCH_AT = cfg.get('touch_at', 12)
    for ks in range(16):
        fill = {i: [] for i in range(32)}
        for j in range(8):
            n = ks*8 + j + 3
            if n < 128:
                fill[4*j].append(('v', w_read(n, 0))); fill[4*j+1].append(('v', w_read(n, 1)))
        if ks + DEPTH - 1 < 16:
            for rt in range(4): fill[2+8*rt].append(('v', act_load(ks+DEPTH-1, rt)))
        if ks == TOUCH_AT:
            if cfg.get('htouch', True): fill[2].append(('v', f"buffer_load_dword a232, v{FV+2}, {sr(S_WS,4)}, s{sHS} offen sc1 {cfg.get('nth', NT)}"))
            if cfg.get('touch64'): fill[6].append(('v', f"buffer_load_dword a233, v{FV+2}, {sr(S_WS,4)}, s{sHS} offen offset:64 sc1 {cfg.get('nth', NT)}"))
            fill[10].append(('v', res_loads[0])); fill[18].append(('v', res_loads[1]))
            fill[26].append(('v', f4_touch[0])); fill[30].append(('u', f4_touch[1]))
        for hs in range(2):
            for k2 in range(14):
                if w2_rd[k2] == 2*ks + hs:
                    fill[16*hs].insert(0, ('wt', k2))
                    slots = [0, 1, 4, 5, 8, 9, 12, 13]
                    for x in range(8): fill[16*hs+slots[x]].append(('r2', (k2, w2_read(k2, x >> 1, x & 1))))
                if w2_issue[k2] == 2*ks + hs:
                    for ii in range(4): fill[16*hs+3+4*ii].append(('dma', (k2, ii)))
        if ks % 4 == 0 and ks: stamp(f"_g{ks}")
        for i in range(32):
            j, rt = divmod(i, 4); n = ks*8 + j
            d = vr(ACC+16*j+4*rt, 4)
            I(f"v_mfma_f32_16x16x32_bf16 {d}, {vr(WR_+4*(n%4),4)}, {vr(ACT+16*(ks%DEPTH)+4*rt,4)}, {d if ks else 0}")
            if i < 31:
                j2, rt2 = divmod(i+1, 4); a.need(vr(WR_+4*((ks*8+j2)%4),4) + " " + vr(ACT+16*(ks%DEPTH)+4*rt2,4))
            elif ks < 15: a.need(vr(WR_+4*((ks*8+8)%4),4) + " " + vr(ACT+16*((ks+1)%DEPTH),4))
            for kind, x in fill[i]:
                if kind == 'v': I(x)
                elif kind == 'u': I(x.replace('a[234:235]', 'a[236:237]'))
                elif kind == 'wt': a.wait_tok(w2tok[x])
                elif kind == 'r2': w2rdtok[x[0]] = I(x[1])
                elif kind == 'dma':
                    if x[1] == 0 and x[0] >= 2: a.wait_tok(w2rdtok[x[0]-2])
                    s, v = w2_dma(*x); I(s); w2tok[x[0]] = I(v)
    stamp("G1done")
    I("s_barrier")
    I(f"s_mov_b32 s58, {fhex(KAPPA)}\ns_mov_b32 s59, s58\ns_add_u32 s{sA}, s{sHS}, {448*1024}\ns_add_u32 s{sA+1}, s{sF4S}, 0x2000")
    GT = WR_
    HP = ACT
    def gelu(G, U, n, dst, tb):
        s = GT + tb
        for e in range(0, n, 2): I(f"v_pk_fma_f32 {vr(s+e,2)}, {vr(G+e,2)}, {vr(G+e,2)}, s[58:59]")
        for e in range(0, n, 2): I(f"v_pk_mul_f32 {vr(s+e,2)}, {vr(s+e,2)}, {vr(G+e,2)}")
        for e in range(n): I(f"v_exp_f32 v{s+e}, -v{s+e}")
        for e in range(0, n, 2): I(f"v_pk_mul_f32 {vr(G+e,2)}, {vr(G+e,2)}, {vr(U+e,2)}")
        for e in range(0, n, 2): I(f"v_pk_add_f32 {vr(s+e,2)}, {vr(s+e,2)}, 1.0 op_sel_hi:[1,0]")
        for e in range(n): I(f"v_rcp_f32 v{s+e}, v{s+e}")
        for e in range(0, n, 2): I(f"v_pk_mul_f32 {vr(G+e,2)}, {vr(G+e,2)}, {vr(s+e,2)}")
        for e in range(0, n, 2): I(f"v_cvt_pk_bf16_f32 v{dst+e//2}, v{G+e}, v{G+e+1}")
    step = [32]
    def w2_tail_step():
        ks = step[0]; step[0] += 1
        for k2 in range(14):
            if w2_rd[k2] == ks:
                a.wait_tok(w2tok[k2])
                for x in range(8): w2rdtok[k2] = I(w2_read(k2, x >> 1, x & 1))
        for k2 in range(14):
            if w2_issue[k2] == ks:
                if k2 >= 2: a.wait_tok(w2rdtok[k2-2])
                for ii in range(4):
                    s, v = w2_dma(k2, ii); I(s); w2tok[k2] = I(v)
    F1AT, P1AT = cfg.get('f1_at', 1), cfg.get('p1_at', 2)
    for st in range(2):
        for rt in range(4):
            h = HP + 4*(rt % 2)
            gelu(ACC+32*st+4*rt, ACC+64+32*st+4*rt, 4, h, 0); gelu(ACC+32*st+16+4*rt, ACC+80+32*st+4*rt, 4, h+2, 4)
            tk = modal([f"buffer_store_dwordx4 {vr(h,4)}, v{vL16}, {sr(S_WS,4)}, s{sA if st else sHS} offen offset:{1024*rt}"])
            if st == 0: tk1 = tk
            w2_tail_step()
            if st == 1 and rt == F1AT:
                a.wait_tok(tk1)
                I("s_mov_b64 exec, 1")
                modal([f"buffer_store_dwordx2 {vr(FLG,2)}, off, {sr(S_WS,4)}, s{sF4S}"])
                I("s_mov_b64 exec, -1")
            if st == 1 and rt == P1AT: flagload(f"s{sF4L}")
    while step[0] <= max(w2_rd.values()): w2_tail_step()
    tk2 = tk
    stamp("gelu")
    a.label("L_join")
    flagcheck("f4a", f"s{sF4L}")
    stamp("f4a")
    V.put(ACC, 128); V.put(ACT, 16*DEPTH); V.put(WR_, 16)
    HF = V.get(16*9, 4)
    AC2 = V.get(64, 4)
    def h_load(k2, x):
        t = f"buffer_load_dwordx4 {vr(HF+16*(k2%9)+4*x,4)}, v{vL16}, {sr(S_WS,4)}, s60 offen offset:{1024*x} sc1"
        if x == 0: t = f"s_add_u32 s60, s{sHL}, {(k2//7)*448*1024 + (k2%7)*4096}\n" + t
        return t
    NPRE = cfg.get('npre', 3)
    for k2 in range(NPRE):
        for x in range(4): I(h_load(k2, x))
    a.wait_tok(tk2)
    I(f"s_cmp_ge_u32 s{sM}, 28\ns_cbranch_scc1 L_nof2\ns_mov_b64 exec, 1")
    modal([f"buffer_store_dwordx2 {vr(FLG,2)}, off, {sr(S_WS,4)}, s{sA+1}"]); a.vm.pop()
    I("s_mov_b64 exec, -1")
    a.label("L_nof2")
    I(f"s_add_u32 s{sF4L}, s{sF4L}, 0x2000")
    def mm(k2, rt, ct):
        d = vr(AC2+16*rt+4*ct, 4)
        I(f"v_mfma_f32_16x16x32_bf16 {d}, {ar(16*k2+4*ct,4)}, {vr(HF+16*(k2%9)+4*rt,4)}, {d if k2 else 0}")
    vO, vPW, vPR = V.get(), V.get(4, 1), V.get(2, 1)
    misc = [f"v_lshrrev_b32 v{t0}, 3, v{vL}", f"v_and_b32 v{t1}, 7, v{vL}", f"v_lshlrev_b32 v{t3}, 4, v{t1}", f"v_lshl_add_u32 v{vO}, v{t0}, 18, v{t3}",
            f"v_lshlrev_b32 v{t1}, 1, v{t1}", f"v_xor_b32 v{t1}, v{t1}, v{t0}", f"v_lshl_add_u32 v{t0}, v{t2}, 4, v{t0}", f"v_lshlrev_b32 v{t0}, 8, v{t0}", f"v_lshl_add_u32 v{vPR}, v{t1}, 4, v{t0}", f"v_xor_b32 v{vPR+1}, 16, v{vPR}",
            f"v_and_b32 v{t0}, 7, v{vN}", f"v_xor_b32 v{t0}, v{t0}, v{vQ}", f"v_lshlrev_b32 v{t0}, 4, v{t0}", f"v_lshl_add_u32 v{t0}, v{vN}, 8, v{t0}", f"v_lshl_add_u32 v{vPW}, v{t2}, 14, v{t0}",
            f"v_xor_b32 v{vPW+1}, 64, v{vPW}", f"v_xor_b32 v{vPW+2}, 0x80, v{vPW}", f"v_xor_b32 v{vPW+3}, 0xc0, v{vPW}"]
    for t in misc: I(t)
    F2L, F2C = cfg.get('f2_load', 5), cfg.get('f2_check', 7)
    NSEQ = cfg.get('nseq', 3)
    nxt = [NPRE*4]
    def next_load(cur):
        k2, x = divmod(nxt[0], 4)
        if k2 >= 14 or k2 - 9 >= cur: return
        if x == 0 and k2 == F2L: flagload(f"s{sF4L}")
        if x == 0 and k2 == 7: flagcheck("f4b", f"s{sF4L}")
        I(h_load(k2, x)); nxt[0] += 1
    RATE = cfg.get('g2_rate', 3)
    cnt = 0
    for k2 in range(14 - NSEQ):
        for rt in range(4):
            for ct in range(4):
                mm(k2, rt, ct); cnt += 1
                if ct == 3:
                    k3, r3 = (k2, rt+1) if rt < 3 else (k2+1, 0)
                    while nxt[0] <= 4*k3 + r3: next_load(k2)
                    a.need(vr(HF+16*(k3%9)+4*r3, 4))
                elif cnt % RATE == 0: next_load(k2)
    while nxt[0] < 56: next_load(14)
    wr = []
    for rt in range(4):
        n = 0
        for k2 in range(14 - NSEQ, 14):
            for ct in range(4):
                mm(k2, rt, ct); n += 1
                if wr and n >= 4 and n % 2 == 0: I(wr.pop(0))
        for t in wr: I(t)
        wr = [f"ds_write_b128 v{vPW+ct}, {vr(AC2+16*rt+4*ct,4)} offset:{4096*rt}" for ct in range(4)]
    RES = V.get(8, 4); RF = HF + 64
    for i in range(8): I(f"v_accvgpr_read_b32 v{RES+i}, a{224+i}")
    for t in wr: I(t)
    stamp("G2done")
    a.wait_lg0(); I("s_barrier")
    PR = HF
    for p in range(2):
        for e in range(2):
            for j in range(4): I(f"ds_read_b128 {vr(PR+32*p+16*e+4*j,4)}, v{vPR+e} offset:{16384*j+2048*p}")
    unpack(RF, RES, 8)
    I(f"s_mov_b32 s58, {fhex(1/(BETA*BETA))}\ns_mov_b32 s59, s58")
    for p in range(2):
        for e in range(2):
            b = PR + 32*p + 16*e
            for o in (0, 2): I(f"v_pk_add_f32 {vr(b+o,2)}, {vr(b+o,2)}, {vr(b+4+o,2)}\nv_pk_add_f32 {vr(b+8+o,2)}, {vr(b+8+o,2)}, {vr(b+12+o,2)}")
            for o in (0, 2): I(f"v_pk_add_f32 {vr(b+o,2)}, {vr(b+o,2)}, {vr(b+8+o,2)}")
            for o in (0, 2): I(f"v_pk_fma_f32 {vr(b+o,2)}, {vr(b+o,2)}, s[58:59], {vr(RF+8*p+4*e+o,2)}")
            for o in (0, 2): I(f"v_cvt_pk_bf16_f32 v{RES+4*p+2*e+o//2}, v{b+o}, v{b+o+1}")
        I(f"buffer_store_dwordx4 {vr(RES+4*p,4)}, v{vO}, {sr(S_OUT,4)}, s{sOUT} offen offset:{1024*p} {cfg.get('outflag','')}")
    def toucher():
        b = Asm(); J = b.I
        b.label("L_touch")
        J("s_barrier")
        J(f"s_sub_u32 s58, s{sM}, 28\ns_mul_i32 s58, s58, {448*1024}\ns_lshl_b32 s59, s{sW}, 13\ns_add_u32 s58, s58, s59\nv_lshlrev_b32 v{t0}, 7, v{vL}")
        for k2 in range(4, 14):
            J(f"s_add_u32 s60, s58, {(64*(k2%7) + 32*(k2//7))*1024}\nbuffer_load_dword v{32+2*k2}, v{t0}, {sr(S_WD,4)}, s60 offen")
            if cfg.get('touch64'): J(f"buffer_load_dword v{33+2*k2}, v{t0}, {sr(S_WD,4)}, s60 offen offset:64")
        for t in res_loads: J(t)
        tk = {}; rk = {}
        for k2 in range(15):
            if k2 < 14:
                if k2 >= 2: b.wait_tok(rk[k2-2])
                for ii in range(4):
                    s, v = w2_dma(k2, ii); J(s); tk[k2] = J(v)
            if k2 >= 1:
                b.wait_tok(tk[k2-1])
                for x in range(8): rk[k2-1] = J(w2_read(k2-1, x >> 1, x & 1))
        J(f"buffer_load_dwordx2 {vr(FV,2)}, v{vFL}, {sr(S_WS,4)}, s{sF4L} offen sc1")
        if dbg:
            for i, nm in enumerate(cfg['stamp_names']):
                if nm in ('G1done', 'gelu') or nm.startswith('_g'): J(f"s_memrealtime s[{STS[i]}:{STS[i]+1}]")
        J("s_waitcnt vmcnt(0) lgkmcnt(0)\ns_branch L_join")
        return b.text()
    if cfg.get('padto'):
        a.label("L_padto")
        I(f"s_memrealtime s[98:99]\ns_sub_u32 s98, s98, s100\ns_cmp_lt_u32 s98, {cfg['padto']}\ns_cbranch_scc1 L_padto")
    if dbg:
        a.wait_vm0(); stamp("end"); a.wait_lg0()
        I(f"s_lshl_b32 s58, s2, 2\ns_add_u32 s58, s58, s{sW}\ns_lshl_b32 s58, s58, 7\ns_add_u32 s58, s58, {STAMP}\ns_mov_b64 exec, 1")
        for i in range(nst[0]):
            I(f"v_mov_b32 v4, s{STS[i]}\nbuffer_store_dword v4, off, {sr(S_WS,4)}, s58 offset:{4*i}")
        I(f"v_mov_b32 v4, s{sSPIN}\nbuffer_store_dword v4, off, {sr(S_WS,4)}, s58 offset:120\nv_mov_b32 v4, s{sMODE}\nbuffer_store_dword v4, off, {sr(S_WS,4)}, s58 offset:124")
    a.label("L_end")
    I("s_endpgm")
    a.raw(toucher())
    for n, lines in cfg.get('_tail', []):
        a.label(f"L_slow{n}")
        for t in lines: a.raw("  " + t + " sc1")
        a.raw("  s_nop 1")
        a.raw(f"  s_branch L_back{n}")
    a.raw(".p2align 8\nL_pad:\n.fill 8192, 4, 0xbf810000" if cfg.get('pad', True) else "")
    a.raw(f'''.section .rodata,"a"
.p2align 6
.amdhsa_kernel {NAME}_kernel
  .amdhsa_next_free_vgpr 512
  .amdhsa_next_free_sgpr 102
  .amdhsa_accum_offset 256
  .amdhsa_group_segment_fixed_size 0
  .amdhsa_kernarg_size 80
  .amdhsa_user_sgpr_count 2
  .amdhsa_user_sgpr_kernarg_segment_ptr 1
  .amdhsa_system_sgpr_workgroup_id_x 1
.end_amdhsa_kernel''')
    return a

if __name__ == "__main__":
    import json
    out = sys.argv[1]
    cfg = json.loads(sys.argv[2]) if len(sys.argv) > 2 else {}
    a = gen(cfg)
    hdr = ""
    open(out, "w").write(hdr + a.text())
    json.dump(cfg.get('stamp_names', []), open(out + ".stamps", "w"))
    print("instrs", sum(a.count.values()), "nops", a.count.get('s_nop', 0), "waits", a.count.get('s_waitcnt', 0))
```

```python
import sys, math
from asmlib import *
NAME = "sequential_preLN__spectral_gfnet__glu_gated_geglu__prompt"
BETA = struct.unpack('<f', struct.pack('<f', (0.044715 * 2 * math.sqrt(2/math.pi) * math.log2(math.e)) ** (1/3)))[0]
KAPPA = 2 * math.sqrt(2/math.pi) * math.log2(math.e) / BETA
X1, HN, HR, GR = 0, 0, 0x200000, 0x400000
FL0, FL3, FL4, GEN, STAMP = 0x1000000, 0x1010000, 0x1020000, 0x1030000, 0x1040000
WS_SIZE = 0x1100000
IMG_G, IMG_U, STG = 0, 65536, 131072
SCR_A, SCR_X, SCR_W, SCR_BI, SCR_BO, SCR_C = STG, STG + 8192, STG + 24576, STG + 8320, STG, STG + 16384
SPIN = 0x20000
S_WR, S_WI, S_W1, S_WU, S_WS, S_OUT = 24, 28, 32, 36, 40, 44
S_WD = S_WR
sW, sG, sM, sPOS, sTAG, sMODE, sSPIN, sXCC = 48, 49, 50, 51, 52, 54, 55, 56
sT = 57
sA = 64
STS = list(range(70, 102, 2)) + [10, 4, 6, 8, 20]

class Alloc:
    def __init__(self, lo, hi): self.free = list(range(lo, hi))
    def get(self, n=1, al=None):
        al = al or (2 if n > 1 else 1)
        fs = set(self.free)
        for b in self.free:
            if b % al == 0 and all((b + i) in fs for i in range(n)):
                for i in range(n): self.free.remove(b + i)
                return b
        raise Exception(f"out of vgprs ({n})")
    def put(self, b, n=1):
        for i in range(n):
            assert b + i not in self.free
            self.free.append(b + i)
        self.free.sort()

def gen(cfg):
    a = Asm(); I = a.I
    dbg = cfg.get('stamps', False)
    nst = [0]
    def stamp(name):
        if name in cfg.get('probe', []):
            k = 94 + 2*cfg['probe'].index(name); I(f"s_memrealtime s[{k}:{k+1}]")
        if dbg and (name in cfg.get('extra', []) or (not name.startswith('_') and name not in cfg.get('skip', []))):
            I(f"s_memrealtime s[{STS[nst[0]]}:{STS[nst[0]]+1}]"); nst[0] += 1
            cfg.setdefault('stamp_names', []).append(name)
    V = Alloc(32, 256)
    vL, vN, vQ = 1, 2, 3
    t0, t1, t2, t3, FLG, FV, vFL, vL16, vG1, vS2, vD2, vW1 = 4, 5, 6, 7, 8, 12, 16, 17, 18, 26, 30, 31
    NT = cfg.get('nt', 'nt')
    lab = [0]
    def srd(s, base, size):
        I(f"s_mov_b32 s{s}, s{base}\ns_mov_b32 s{s+1}, s{base+1}\ns_mov_b32 s{s+2}, {size}\ns_mov_b32 s{s+3}, 0x20000")
    def modal(lines):
        for t in lines: a.need(t)
        lab[0] += 1; n = lab[0]
        I(f"s_cmp_eq_u32 s{sMODE}, 0\ns_cbranch_scc1 L_slow{n}")
        tok = None
        for t in lines: tok = I(t)
        a.label(f"L_back{n}")
        cfg.setdefault('_tail', []).append((n, lines))
        return tok
    def spin_check():
        I(f"s_add_u32 s{sSPIN}, s{sSPIN}, 1\ns_cmp_ge_u32 s{sSPIN}, {SPIN}\ns_cbranch_scc1 L_end")

    a.raw(f"; @launch grid=(256,1,1) block=(256,1,1) lds=163840")
    a.raw('.amdgcn_target "amdgcn-amd-amdhsa--gfx950"\n.text')
    a.raw(f".globl {NAME}_kernel\n.p2align 8\n.type {NAME}_kernel,@function\n{NAME}_kernel:")
    I("s_cmp_ge_u32 s2, 256\ns_cbranch_scc0 L_go\ns_endpgm")
    a.label("L_go")
    I("s_load_dwordx16 s[4:19], s[0:1], 0\ns_load_dwordx4 s[20:23], s[0:1], 64")
    PF = V.get(2)
    I(f"s_getpc_b64 s[60:61]\ns_lshr_b32 s{sM}, s2, 3\ns_lshl_b32 s58, s{sM}, 10\nv_lshl_add_u32 v{t1}, v0, 2, s58\nglobal_load_dword v{PF}, v{t1}, s[60:61]")
    stamp("start")
    if cfg.get('padto'): I("s_memrealtime s[100:101]")
    I(f"s_and_b32 s{sG}, s2, 7\ns_lshr_b32 s{sM}, s2, 3\ns_lshl_b32 s{sPOS}, s{sG}, 5\ns_add_u32 s{sPOS}, s{sPOS}, s{sM}")
    XR = V.get(8, 4)
    I(f"v_lshrrev_b32 v{t0}, 5, v0\nv_and_b32 v{t1}, 31, v0\nv_lshlrev_b32 v{t0}, 18, v{t0}\nv_lshlrev_b32 v{t1}, 4, v{t1}\ns_lshl_b32 s{sA}, s{sPOS}, 10")
    I(f"v_add3_u32 v{t0}, v{t0}, v{t1}, s{sA}")
    I(f"v_and_b32 v{vL}, 63, v0\nv_lshrrev_b32 v{t2}, 6, v0\nv_and_b32 v{vN}, 15, v0\nv_bfe_u32 v{vQ}, v0, 4, 2\nv_readfirstlane_b32 s{sW}, v{t2}")
    vX1S, vX2S = V.get(), V.get()
    ONES = V.get(4, 4)
    for i in range(4): I(f"v_mov_b32 v{ONES+i}, -1")
    I(f"v_lshlrev_b32 v{t1}, 19, v{vQ}\nv_lshl_add_u32 v{t1}, v{vN}, 4, v{t1}\nv_lshl_add_u32 v{vX1S}, v{t2}, 8, v{t1}")
    I(f"v_bfe_u32 v{t1}, v0, 4, 3\nv_lshlrev_b32 v{t1}, 20, v{t1}\nv_bfe_u32 v{t3}, v0, 3, 1\nv_lshl_add_u32 v{t1}, v{t3}, 9, v{t1}\nv_and_b32 v{t3}, 0x80, v0\nv_add_u32 v{t1}, v{t1}, v{t3}\nv_and_b32 v{t3}, 7, v0\nv_lshl_add_u32 v{vX2S}, v{t3}, 4, v{t1}")
    WL = V.get(8, 4); WSP = V.get(2); vWS = V.get()
    I(f"v_and_b32 v{t1}, 3, v0\nv_bfe_u32 v{t3}, v0, 5, 1\nv_lshl_add_u32 v{t1}, v{t3}, 4, v{t1}\nv_mul_u32_u24 v{t1}, 4112, v{t1}")
    I(f"v_lshlrev_b32 v{vWS}, 17, v{t3}\nv_bfe_u32 v{t3}, v0, 2, 3\nv_lshl_add_u32 v{t3}, v{t2}, 3, v{t3}\nv_lshl_add_u32 v{t1}, v{t3}, 4, v{t1}")
    I(f"v_lshrrev_b32 v{t3}, 2, v{t3}\nv_lshl_add_u32 v{vWS}, v{t3}, 13, v{vWS}\nv_lshl_add_u32 v{vWS}, v{vN}, 4, v{vWS}")
    I(f"s_lshr_b32 s58, s{sM}, 3\ns_lshl_b32 s58, s58, 6\ns_and_b32 s59, s{sM}, 1\ns_lshl_b32 s59, s59, 5\ns_add_u32 s58, s58, s59\ns_and_b32 s59, s{sM}, 6\ns_lshl_b32 s59, s59, 1\ns_add_u32 s58, s58, s59")
    I(f"s_mul_i32 s58, s58, 4112\ns_mul_i32 s59, s{sG}, 514\ns_add_u32 s58, s58, s59\nv_add_u32 v{t3}, s58, v{t1}")
    I(f"s_add_u32 s{sA+1}, s{sA}, {GR}\ns_add_u32 s63, s{sA}, 0x40000\ns_mov_b32 s{sSPIN}, 0\ns_getreg_b32 s{sXCC}, hwreg(HW_REG_XCC_ID)\ns_and_b32 s{sXCC}, s{sXCC}, 15")
    I(f"s_lshl_b32 s58, s{sG}, 20\ns_lshl_b32 s59, s{sM}, 8\ns_add_u32 s58, s58, s59\ns_add_u32 s{sA+2}, s58, {GR + 0x40000}\ns_add_u32 s62, s{sA+2}, 0x10000")
    I(f"global_load_dwordx4 {vr(XR,4)}, v{t0}, s[4:5] {NT}\nglobal_load_dwordx4 {vr(XR+4,4)}, v{t0}, s[4:5] offset:512 {NT}")
    I(f"s_cmp_lg_u32 s{sW}, 0\ns_cbranch_scc1 L_nosp\ns_mov_b32 exec_lo, 15\ns_mov_b32 exec_hi, 15")
    I(f"global_load_ushort v{WSP}, v{t3}, s[6:7] offset:512\nglobal_load_ushort v{WSP+1}, v{t3}, s[8:9] offset:512", track=False)
    I("s_mov_b64 exec, -1")
    a.label("L_nosp")
    I(f"global_load_dwordx4 {vr(WL,4)}, v{t3}, s[6:7] {NT}\nglobal_load_dwordx4 {vr(WL+4,4)}, v{t3}, s[8:9] {NT}")
    I(f"s_add_u32 s60, s22, {GEN}\ns_addc_u32 s61, s23, 0")
    I(f"s_load_dwordx2 s[{sTAG}:{sTAG+1}], s[60:61], 0")
    srd(S_WS, 22, WS_SIZE)
    stamp('_ld')
    I(f"v_lshrrev_b32 v{t0}, 3, v{vL}\nv_and_b32 v{t1}, 6, v{t0}\nv_and_b32 v{t3}, 7, v{vL}\nv_xor_b32 v{t1}, v{t1}, v{t3}\nv_lshlrev_b32 v{t1}, 4, v{t1}\nv_lshl_add_u32 v{vD2}, v{t0}, 10, v{t1}")
    I(f"v_and_b32 v{t3}, 4, v{t0}\nv_add_u32 v{t0}, v{t0}, v{t3}\nv_mul_u32_u24 v{t0}, 3584, v{t0}\nv_add_u32 v{vW1}, v{t0}, v{t1}\nv_lshlrev_b32 v{vL16}, 4, v{vL}")
    srd(S_W1, 12, 512*3584); srd(S_WU, 14, 512*3584)
    I(f"s_and_b32 s58, s{sW}, 1\ns_lshl_b32 s58, s58, 4\ns_lshr_b32 s59, s{sW}, 1\ns_lshl_b32 s59, s59, 2\ns_add_u32 s58, s58, s59\ns_mul_i32 s58, s58, 3584\ns_lshl_b32 s59, s{sM}, 7\ns_add_u32 s24, s58, s59")
    I(f"s_mov_b32 s25, {32*3584}\ns_lshl_b32 s26, s{sW}, 10\ns_mul_i32 s27, s{sG}, {cfg.get('stag', 2)}")
    I(f"s_cmp_lt_u32 s{sM}, 28\ns_cbranch_scc1 L_reg0")
    I(f"s_mov_b32 s{S_W1}, s16\ns_mov_b32 s{S_W1+1}, s17\ns_add_u32 s{S_WU}, s16, 1024\ns_addc_u32 s{S_WU+1}, s17, 0\ns_mov_b32 s{S_WU+2}, {512*3584-1024}")
    I(f"v_mov_b32 v{vW1}, v{vL16}\ns_sub_u32 s58, s{sM}, 28\ns_mul_i32 s58, s58, {448*1024}\ns_lshl_b32 s59, s{sW}, 16\ns_add_u32 s24, s58, s59\ns_mov_b32 s25, 2048")
    a.label("L_reg0")
    def w1_pair():
        I(f"s_mul_i32 s28, s27, s25\ns_add_u32 s28, s28, s24\ns_lshl_b32 s29, s27, 12\ns_add_u32 m0, s29, s26\ns_add_u32 s27, s27, 1")
        I(f"buffer_load_dwordx4 v{vW1}, {sr(S_W1,4)}, s28 offen lds")
        I(f"s_add_u32 m0, m0, {IMG_U}\ns_and_b32 s27, s27, 15\nbuffer_load_dwordx4 v{vW1}, {sr(S_WU,4)}, s28 offen lds")
    W1AT = cfg.get('w1_at', {'start': 1, 'tabA': 1, 'xarr': 2, 'adone': 2, 'x1ld': 2, 'bbar': 2, 'bdone': 2, 'x2ld': 2, 'cbar': 2})
    assert sum(W1AT.values()) == 16
    def w1_point(name):
        for _ in range(W1AT.get(name, 0)): w1_pair()
    w1_point('start')
    clr = [f"buffer_store_dwordx4 {vr(ONES,4)}, v{vX1S}, {sr(S_WS,4)}, s{sA} offen sc1", f"buffer_store_dwordx4 {vr(ONES,4)}, v{vX1S}, {sr(S_WS,4)}, s63 offen sc1",
           f"buffer_store_dwordx4 {vr(ONES,4)}, v{vWS}, {sr(S_WS,4)}, s{sA+2} offen sc1", f"buffer_store_dwordx4 {vr(ONES,4)}, v{vWS}, {sr(S_WS,4)}, s62 offen sc1",
           f"buffer_store_dwordx4 {vr(ONES,4)}, v{vX2S}, {sr(S_WS,4)}, s{sA+1} offen sc1", f"buffer_store_dwordx4 {vr(ONES,4)}, v{vX2S}, {sr(S_WS,4)}, s{sA+1} offen offset:256 sc1"]
    tok_clr = [None]
    def clr_point(n):
        for _ in range(n):
            if clr: tok_clr[0] = I(clr.pop(0))
    CL = cfg.get('clr', [2, 2, 2])
    clr_point(CL[0])
    stamp('_clr')
    vR, vC = V.get(), V.get()
    EA = V.get(16, 4)
    GA = V.get(64, 4)
    fq, fn = V.get(), V.get()
    I(f"v_cvt_f32_u32 v{fq}, v{vQ}\nv_cvt_f32_u32 v{fn}, v{vN}")
    vSGN_ODD = V.get()
    I(f"v_and_b32 v{t0}, 1, v{vN}\nv_mul_u32_u24 v{t0}, 0x8000, v{t0}\nv_lshl_or_b32 v{vSGN_ODD}, v{t0}, 16, v{t0}")
    T = V.get(16, 4)
    I(f"v_lshrrev_b32 v{t0}, 1, v{vN}\nv_mul_u32_u24 v{t1}, v{t0}, v{vQ}\nv_and_b32 v{t3}, 1, v{vN}\nv_lshl_add_u32 v{t1}, v{t3}, 1, v{t1}\nv_cvt_f32_u32 v{t1}, v{t1}\nv_mul_f32 v{t1}, 0.125, v{t1}".replace("0.125", fhex(0.125)))
    I(f"v_and_b32 v{t0}, 1, v{t0}\nv_mul_u32_u24 v{t0}, 0x8000, v{t0}\nv_lshl_or_b32 v{t0}, v{t0}, 16, v{t0}")
    I(f"v_cvt_f32_u32 v{t3}, v{t2}\nv_mul_f32 v{t3}, {fhex(0.25)}, v{t3}")
    for cb in range(2):
        if cb: I(f"v_add_f32 v{t3}, {fhex(0.125)}, v{t3}")
        I(f"v_add_f32 v{T+1}, v{t1}, v{t3}\nv_add_f32 v{T+2}, v{T+1}, v{t3}\nv_add_f32 v{T+3}, v{T+2}, v{t3}")
        I(f"v_cos_f32 v{T}, v{t1}\nv_cos_f32 v{T+1}, v{T+1}\nv_cos_f32 v{T+2}, v{T+2}\nv_cos_f32 v{T+3}, v{T+3}")
        e = EA + 8*cb
        I(f"v_cvt_pk_f16_f32 v{e}, v{T}, v{T+1}\nv_cvt_pk_f16_f32 v{e+1}, v{T+2}, v{T+3}")
        if cb: I(f"v_xor_b32 v{e+2}, 0x80008000, v{e}\nv_xor_b32 v{e+3}, 0x80008000, v{e+1}")
        else: I(f"v_mov_b32 v{e+2}, v{e}\nv_mov_b32 v{e+3}, v{e+1}")
        for i in range(4): I(f"v_xor_b32 v{e+4+i}, v{t0}, v{e+i}")
    clr_point(CL[1])
    def recur(nch, kf, a0, nsteps, scale, dst, cvt, fix=None):
        TW = V.get(2*nch, 2); P = V.get(4*nch, 2)
        for ch in range(nch):
            p = P + 4*ch
            I(f"v_add_f32 v{p+3}, v{a0[ch]}, v{kf[ch]}\nv_cos_f32 v{TW+2*ch}, v{kf[ch]}\nv_cos_f32 v{p}, v{a0[ch]}\nv_sin_f32 v{p+1}, v{a0[ch]}\nv_cos_f32 v{p+2}, v{p+3}\nv_sin_f32 v{p+3}, v{p+3}")
        I(f"s_mov_b32 s58, {fhex(scale)}")
        for ch in range(nch):
            p = P + 4*ch
            I(f"v_add_f32 v{TW+2*ch}, v{TW+2*ch}, v{TW+2*ch}")
            I(f"v_pk_mul_f32 {vr(p,2)}, {vr(p,2)}, s[58:59] op_sel_hi:[1,0]\nv_pk_mul_f32 {vr(p+2,2)}, {vr(p+2,2)}, s[58:59] op_sel_hi:[1,0]")
        for jp in range(nsteps//2):
            for ch in range(nch):
                p = P + 4*ch; rc, rs = dst(ch, jp)
                if fix and jp == 0 and fix(ch) is not None:
                    I(f"v_mul_f32 v{rc}, v{p}, v{fix(ch)}\n{cvt} v{rc}, v{rc}, v{p+2}")
                else: I(f"{cvt} v{rc}, v{p}, v{p+2}")
                I(f"{cvt} v{rs}, v{p+1}, v{p+3}")
            if jp + 1 < nsteps//2:
                for o in (0, 2):
                    for ch in range(nch):
                        p = P + 4*ch
                        I(f"v_pk_fma_f32 {vr(p+o,2)}, {vr(p+2-o,2)}, {vr(TW+2*ch,2)}, {vr(p+o,2)} op_sel_hi:[1,0,1] neg_lo:[0,0,1] neg_hi:[0,0,1]")
        V.put(TW, 2*nch); V.put(P, 4*nch)
    I(f"v_lshlrev_b32 v{t0}, 4, v{vN}\nv_lshl_add_u32 v{t0}, v{t2}, 1, v{t0}\nv_mul_f32 v{t3}, {fhex(16.0)}, v{fq}")
    for u in range(4):
        if u == 0:
            I(f"v_mov_b32 v{T}, 0x100\nv_cmp_eq_u32 vcc, 0, v{t0}\nv_cndmask_b32 v{T}, v{t0}, v{T}, vcc")
        else: I(f"v_add_u32 v{T+u}, {(u&1) + 8*(u>>1)}, v{t0}")
        I(f"v_cvt_f32_u32 v{T+u}, v{T+u}\nv_mul_f32 v{T+u}, {fhex(1/512)}, v{T+u}\nv_mul_f32 v{T+4+u}, v{T+u}, v{t3}")
    clr_point(CL[2])
    recur(4, [T+u for u in range(4)], [T+4+u for u in range(4)], 16, 0.125,
          lambda u, jp: (GA + 16*u + 8*(jp//4) + jp % 4, GA + 16*u + 8*(jp//4) + 4 + jp % 4), "v_cvt_pk_f16_f32")
    clr_point(6)
    w1_point('tabA')
    vAW = V.get(2, 1); vAR = V.get(4, 1)
    I(f"v_lshrrev_b32 v{t0}, 5, v0\nv_and_b32 v{t1}, 31, v0\nv_lshlrev_b32 v{t1}, 4, v{t1}\nv_lshl_add_u32 v{t1}, v{t0}, 10, v{t1}")
    vXW = V.get()
    I(f"v_add_u32 v{vXW}, {SCR_X}, v{t1}")
    I(f"v_and_b32 v{t0}, 1, v{t0}\nv_lshlrev_b32 v{t0}, 3, v{t0}\nv_and_or_b32 v{t0}, v0, 16, v{t0}\nv_xor_b32 v{t1}, v{t0}, v{t1}\nv_add_u32 v{vAW}, {SCR_A}, v{t1}\nv_xor_b32 v{vAW+1}, 8, v{vAW}")
    I(f"v_lshrrev_b32 v{vR}, 2, v{vN}\nv_and_b32 v{vC}, 3, v{vN}")
    I(f"v_lshlrev_b32 v{t0}, 10, v{vQ}\nv_lshl_add_u32 v{t0}, v{vR}, 7, v{t0}\nv_lshl_add_u32 v{t0}, v{vC}, 5, v{t0}")
    I(f"v_and_b32 v{t1}, 1, v{vQ}\nv_and_or_b32 v{t1}, v{vR}, 2, v{t1}\nv_lshl_add_u32 v{t0}, v{t1}, 3, v{t0}\nv_add_u32 v{vAR}, {SCR_A}, v{t0}")
    for tp in range(1, 4): I(f"v_xor_b32 v{vAR+tp}, {8*tp}, v{vAR}")
    I(f"s_add_u32 s{sTAG}, s{sTAG}, 0x7f4a7c15\ns_addc_u32 s{sTAG+1}, s{sTAG+1}, 0x9e3779b9")
    I(f"v_mov_b32 v{FLG}, s{sTAG}\nv_mov_b32 v{FLG+1}, s{sTAG+1}\nv_mov_b32 v{FLG+2}, s{sXCC}\nv_mov_b32 v{FLG+3}, 0")
    I(f"s_lshl_b32 s{sT}, s{sPOS}, 4\ns_add_u32 s{sA+5}, s{sT}, {FL0}")
    stamp("tabA")
    XF = V.get(16, 4)
    def unpack(dst, src, n):
        for i in range(n):
            I(f"v_lshlrev_b32 v{dst+2*i}, 16, v{src+i}\nv_and_b32 v{dst+2*i+1}, 0xffff0000, v{src+i}")
    a.need(vr(XR, 8))
    stamp("xarr")
    w1_point('xarr')
    unpack(XF, XR, 8)
    def stats(X, wide, extra_scale):
        S, Q2 = T, T + 4
        I(f"v_pk_add_f32 {vr(S,2)}, {vr(X,2)}, {vr(X+2,2)}\nv_pk_add_f32 {vr(S+2,2)}, {vr(X+4,2)}, {vr(X+6,2)}")
        I(f"v_pk_mul_f32 {vr(Q2,2)}, {vr(X,2)}, {vr(X,2)}\nv_pk_mul_f32 {vr(Q2+2,2)}, {vr(X+2,2)}, {vr(X+2,2)}")
        for i in range(4, 16, 2):
            o = (i//2 % 2)*2
            if i >= 8: I(f"v_pk_add_f32 {vr(S+o,2)}, {vr(S+o,2)}, {vr(X+i,2)}")
            I(f"v_pk_fma_f32 {vr(Q2+o,2)}, {vr(X+i,2)}, {vr(X+i,2)}, {vr(Q2+o,2)}")
        I(f"v_pk_add_f32 {vr(S,2)}, {vr(S,2)}, {vr(S+2,2)}\nv_pk_add_f32 {vr(Q2,2)}, {vr(Q2,2)}, {vr(Q2+2,2)}")
        I(f"v_add_f32 v{S}, v{S}, v{S+1}\nv_add_f32 v{Q2}, v{Q2}, v{Q2+1}")
        dp = "row_mask:0xf bank_mask:0xf"
        if not wide:
            I(f"v_permlane16_swap_b32 v{S}, v{Q2}\nv_add_f32 v{S}, v{S}, v{Q2}")
            for d in ("quad_perm:[1,0,3,2]", "quad_perm:[2,3,0,1]", "row_half_mirror", "row_mirror"):
                I(f"v_add_f32_dpp v{S}, v{S}, v{S} {d} {dp}")
            I(f"v_mov_b32 v{Q2}, v{S}\nv_permlane16_swap_b32 v{S}, v{Q2}")
        else:
            I(f"v_permlane32_swap_b32 v{S}, v{Q2}\nv_add_f32 v{S}, v{S}, v{Q2}")
            for d in ("quad_perm:[2,3,0,1]", "row_ror:4", "row_ror:8"):
                I(f"v_add_f32_dpp v{S}, v{S}, v{S} {d} {dp}")
            I(f"v_mov_b32 v{Q2}, v{S}\nv_permlane16_swap_b32 v{S}, v{Q2}\nv_add_f32 v{S}, v{S}, v{Q2}")
            I(f"v_mov_b32 v{Q2}, v{S}\nv_permlane32_swap_b32 v{S}, v{Q2}")
        I(f"v_mul_f32 v{S}, {fhex(1/512)}, v{S}\nv_mul_f32 v{Q2}, {fhex(1/512)}, v{Q2}\nv_fma_f32 v{Q2}, -v{S}, v{S}, v{Q2}")
        I(f"v_max_f32 v{Q2}, 0, v{Q2}\nv_add_f32 v{Q2}, {fhex(1e-5)}, v{Q2}\nv_rsq_f32 v{Q2}, v{Q2}\nv_mul_f32 v{Q2}, {fhex(extra_scale)}, v{Q2}\nv_mul_f32 v{S+2}, v{S}, v{Q2}")
        return Q2, S + 2
    R_, B_ = stats(XF, False, 0.125)
    XN = V.get(8, 4)
    for i in range(8):
        I(f"v_pk_fma_f32 {vr(XF+2*i,2)}, {vr(XF+2*i,2)}, {vr(R_,2)}, {vr(B_,2)} op_sel_hi:[1,0,0] neg_lo:[0,0,1] neg_hi:[0,0,1]")
    for i in (0, 1, 4, 5, 2, 3, 6, 7):
        I(f"v_cvt_pk_f16_f32 v{XN+i}, v{XF+2*i}, v{XF+2*i+1}")
        if i == 5: I(f"ds_write2_b64 v{vAW}, {vr(XN,2)}, {vr(XN+4,2)} offset0:0 offset1:64")
    I(f"ds_write2_b64 v{vAW+1}, {vr(XN+2,2)}, {vr(XN+6,2)} offset0:0 offset1:64")
    a.wait_tok(tok_clr[0]); a.wait_lg0(); I("s_barrier")
    stamp('_abar')
    V.put(XN, 8); V.put(XF, 16); V.put(ONES, 4)
    AF = V.get(32, 4)
    for tp in range(4):
        for ks in range(2):
            for hh in range(2):
                I(f"ds_read_b64_tr_b16 {vr(AF+8*tp+4*ks+2*hh,2)}, v{vAR+tp} offset:{ks*4096+hh*512}")
    I(f"s_cmp_lg_u32 s{sW}, 0\ns_cbranch_scc1 L_nofl\ns_mov_b64 exec, 1")
    I(f"buffer_store_dwordx4 {vr(FLG,4)}, off, {sr(S_WS,4)}, s{sA+5} sc1", track=False)
    I("s_mov_b64 exec, -1")
    a.label("L_nofl")
    w1_point('abar')
    D1 = V.get(32, 4)
    for tp in range(4):
        for ks in range(2):
            for cb in range(2):
                d = D1 + 16*cb + 4*tp
                I(f"v_mfma_f32_16x16x32_f16 {vr(d,4)}, {vr(AF+8*tp+4*ks,4)}, {vr(EA+8*cb+4*ks,4)}, {vr(d,4) if ks else 0}")
    Y1, Y2 = AF, AF + 16
    D2 = T
    for ks2 in range(2):
        for cb in range(2):
            for e in range(4):
                d = D1 + 16*cb + 8*ks2 + 2*e
                I(f"v_cvt_pk_f16_f32 v{Y1+8*cb+4*ks2+e}, v{d}, v{d+1}")
        for u in range(4):
            I(f"v_mfma_f32_16x16x32_f16 {vr(D2+4*u,4)}, {vr(Y1+8*(u&1)+4*ks2,4)}, {vr(GA+16*u+8*ks2,4)}, {vr(D2+4*u,4) if ks2 else 0}")
            for e in range(2):
                x = 8*((u>>1)) + 4*ks2 + 2*(u&1) + e
                I(f"v_xor_b32_dpp v{Y2+x}, v{Y1+x}, v{vSGN_ODD} quad_perm:[1,0,3,2] row_mask:0xf bank_mask:0xf")
        for u in range(4):
            I(f"v_mfma_f32_16x16x32_f16 {vr(D2+4*u,4)}, {vr(Y2+8*(u&1)+4*ks2,4)}, {vr(GA+16*u+8*ks2+4,4)}, {vr(D2+4*u,4)}")
    O = D1
    for u in range(4):
        for b in range(2):
            I(f"v_cvt_pk_f16_f32 v{O+4*b+u}, v{D2+4*u+2*b}, v{D2+4*u+2*b+1}")
        for b in range(2):
            I(f"v_min_u32 v{O+4*b+u}, -2, v{O+4*b+u}")
    I(f"buffer_store_dwordx4 {vr(O,4)}, v{vX1S}, {sr(S_WS,4)}, s{sA} offen sc1")
    I(f"buffer_store_dwordx4 {vr(O+4,4)}, v{vX1S}, {sr(S_WS,4)}, s63 offen sc1")
    stamp("Adone")
    V.put(EA, 16); V.put(GA, 64); V.put(AF, 32); V.put(vAW, 2); V.put(vAR, 4); V.put(vX1S)
    a.need(vr(WL, 8))
    I(f"s_cmp_lg_u32 s{sW}, 0\ns_cbranch_scc1 L_nosp2\ns_mov_b32 exec_lo, 15\ns_mov_b32 exec_hi, 15\ns_mov_b32 s58, 0xffff0000")
    I(f"v_and_or_b32 v{WL}, v{WL}, s58, v{WSP}\nv_and_or_b32 v{WL+4}, v{WL+4}, s58, v{WSP+1}\ns_mov_b64 exec, -1\ns_nop 1")
    a.label("L_nosp2")
    for ar_ in range(2):
        for e in range(2): I(f"v_permlane32_swap_b32 v{WL+4*ar_+e}, v{WL+4*ar_+2+e}")
    for e in range(2):
        for x in range(4): I(f"v_min_u32 v{O+8+4*e+x}, -2, v{WL+2*x+e}")
        I(f"buffer_store_dwordx4 {vr(O+8+4*e,4)}, v{vWS}, {sr(S_WS,4)}, s{62 if e else sA+2} offen sc1")
    vX1L = V.get()
    I(f"v_lshlrev_b32 v{vFL}, 4, v0\ns_mov_b32 s{sA+5}, {FL0}")
    flag_loads = [f"buffer_load_dwordx2 {vr(FV,2)}, v{vFL}, {sr(S_WS,4)}, s{sA+5} offen sc1"]
    for t in flag_loads: tok_ack1 = I(t)
    w1_point('adone')
    I(f"v_lshrrev_b32 v{t0}, 7, v0\nv_bfe_u32 v{t1}, v0, 1, 2\nv_lshlrev_b32 v{t1}, 4, v{t1}\nv_lshl_add_u32 v{t0}, v{t0}, 6, v{t1}\nv_bfe_u32 v{t1}, v0, 3, 4\nv_add_u32 v{t0}, v{t0}, v{t1}")
    I(f"v_and_b32 v{t1}, 1, v0\nv_lshlrev_b32 v{t1}, 4, v{t1}\nv_lshl_add_u32 v{vX1L}, v{t0}, 10, v{t1}")
    I(f"v_lshlrev_b32 v{t0}, 11, v{vQ}\nv_lshl_add_u32 v{t0}, v{vR}, 9, v{t0}\nv_lshl_add_u32 v{t0}, v{vC}, 4, v{t0}\nv_lshl_add_u32 v{vWS}, v{t2}, 6, v{t0}")
    I(f"s_lshl_b32 s58, s{sG}, 20\ns_lshl_b32 s59, s{sM}, 13\ns_add_u32 s58, s58, s59\ns_add_u32 s{sA+2}, s58, {GR + 0x40000}")
    V.put(D1, 32); V.put(WSP, 2)
    HX = V.get(16, 4)
    I(f"ds_write_b128 v{vXW}, {vr(XR,4)}\nds_write_b128 v{vXW}, {vr(XR+4,4)} offset:512")
    I(f"v_and_b32 v{t0}, 1, v{vN}\nv_lshl_add_u32 v{t0}, v{t2}, 1, v{t0}\nv_lshlrev_b32 v{t0}, 10, v{t0}\nv_lshrrev_b32 v{t1}, 1, v{vN}\nv_lshl_add_u32 v{t0}, v{t1}, 7, v{t0}\nv_lshl_add_u32 v{t0}, v{vQ}, 4, v{t0}\nv_add_u32 v{t0}, {SCR_X}, v{t0}")
    I(f"ds_read_b128 {vr(XR,4)}, v{t0}\nds_read_b128 {vr(XR+4,4)}, v{t0} offset:64")
    V.put(vXW)
    MB = V.get(32, 4)
    TW1, TW2 = V.get(8, 2), V.get(8, 2)
    WF = V.get(16, 2)
    fp1 = V.get()
    I(f"v_cvt_f32_u32 v{fp1}, s{sG}")
    for i in range(4): I(f"v_fma_f32 v{T+i}, v{fq}, 4.0, {['0','1.0','2.0','2.0'][i]}")
    I(f"v_add_f32 v{T+3}, 1.0, v{T+3}\nv_mul_f32 v{t0}, {fhex(8.0)}, v{fn}\nv_add_f32 v{t0}, v{t0}, v{fp1}")
    def cs(ang, scale=None):
        for i in range(4): I(f"v_cos_f32 v{T+8+i}, v{ang+i}\nv_sin_f32 v{T+12+i}, v{ang+i}")
        if scale:
            for i in range(8): I(f"v_mul_f32 v{T+8+i}, {fhex(scale)}, v{T+8+i}")
    def frag(st, cvt, fwd):
        for i in range(4):
            c, s = f"v{T+8+i}", f"v{T+12+i}"
            if fwd: I(f"{cvt} v{MB+8*st+i}, {c}, {s}\n{cvt} v{MB+8*st+4+i}, -{s}, {c}")
            else: I(f"{cvt} v{MB+8*st+i}, {c}, -{s}\n{cvt} v{MB+8*st+4+i}, {s}, {c}")
    I(f"v_mul_f32 v{t1}, {fhex(1/128)}, v{t0}")
    for i in range(4): I(f"v_mul_f32 v{T+4+i}, v{T+i}, v{t1}")
    cs(T+4, 0.25); frag(0, "v_cvt_pk_f16_f32", True)
    for i in range(4):
        I(f"v_mul_f32 v{T+4+i}, {fhex(-1/16)}, v{T+4+i}")
    for i in range(4): I(f"v_cos_f32 v{TW1+i}, v{T+4+i}\nv_sin_f32 v{TW1+4+i}, v{T+4+i}")
    I(f"v_mul_f32 v{t1}, {fhex(1/16)}, v{fn}")
    for i in range(4): I(f"v_mul_f32 v{T+4+i}, v{T+i}, v{t1}")
    cs(T+4); frag(1, "v_cvt_pk_f16_f32", True); frag(2, "v_cvt_pk_bf16_f32", False)
    I(f"v_mul_f32 v{t1}, {fhex(1/128)}, v{fn}\ns_mov_b32 s58, {fhex(8.0)}")
    for i in range(4): I(f"v_fma_f32 v{T+4+i}, v{T+i}, s58, v{fp1}\nv_mul_f32 v{T+4+i}, v{T+4+i}, v{t1}")
    cs(T+4); frag(3, "v_cvt_pk_bf16_f32", False)
    for i in range(4): I(f"v_mul_f32 v{T+4+i}, {fhex(1/16)}, v{T+4+i}")
    for i in range(4): I(f"v_cos_f32 v{TW2+i}, v{T+4+i}\nv_sin_f32 v{TW2+4+i}, v{T+4+i}")
    V.put(fp1)
    unpack(HX, XR, 8); V.put(XR, 8)
    vBW, vBR, vOW, vOR = V.get(), V.get(), V.get(), V.get()
    I(f"v_and_b32 v{t0}, 1, v0\nv_mul_u32_u24 v{t0}, 4160, v{t0}\nv_lshrrev_b32 v{t1}, 1, v0\nv_lshl_add_u32 v{t0}, v{t1}, 2, v{t0}\nv_add_u32 v{vBW}, {SCR_BI}, v{t0}\nv_add_u32 v{vOR}, {SCR_BO}, v{t0}")
    I(f"v_lshlrev_b32 v{t0}, 4, v{vL}\nv_lshl_add_u32 v{t1}, v{t2}, 11, v{t0}\nv_lshrrev_b32 v{t3}, 1, v{t2}\nv_lshl_add_u32 v{t1}, v{t3}, 6, v{t1}\nv_add_u32 v{vBR}, {SCR_BI}, v{t1}")
    I(f"v_lshl_add_u32 v{t0}, v{t2}, 10, v{t0}\nv_add_u32 v{vOW}, {SCR_BO}, v{t0}")
    I(f"s_lshl_b32 s{sT}, s{sG}, 18\ns_lshl_b32 s58, s{sM}, 5\ns_add_u32 s{sA}, s{sT}, s58\ns_add_u32 s63, s{sA}, 0x20000")
    stamp("tabB")
    a.wait_tok(tok_ack1); a.wait_lg0()
    stamp("ack1")
    a.label("L_f0")
    I(f"v_cmp_ne_u64 vcc, s[{sTAG}:{sTAG+1}], {vr(FV,2)}\ns_cbranch_vccz L_f0ok")
    spin_check()
    for t in flag_loads: I(t, track=False)
    I("s_waitcnt vmcnt(0)\ns_branch L_f0")
    a.label("L_f0ok")
    I("s_barrier")
    stamp("_f0")
    IN = V.get(8, 4)
    def check(name, loads, R):
        a.need(vr(R, 8))
        a.label(f"L_{name}")
        I(f"v_max3_u32 v{t0}, v{R}, v{R+1}, v{R+2}\nv_max3_u32 v{t1}, v{R+3}, v{R+4}, v{R+5}\nv_max3_u32 v{t0}, v{t0}, v{R+6}, v{R+7}\nv_max_u32 v{t0}, v{t0}, v{t1}")
        I(f"v_cmp_eq_u32 vcc, -1, v{t0}\ns_cbranch_vccz L_{name}ok")
        spin_check()
        for t in loads: I(t, track=False)
        I(f"s_waitcnt vmcnt(0)\ns_branch L_{name}")
        a.label(f"L_{name}ok")
    def poll(name, loads, fill=None, more=()):
        for t in loads: I(t)
        for t in more: I(t)
        w1_point(name + 'ld')
        if fill: fill()
        check(name, loads, IN)
    wq_loads = [f"buffer_load_dwordx4 {vr(WL+4*h,4)}, v{vWS}, {sr(S_WS,4)}, s{sA+2} offen offset:{256*h} sc1" for h in range(2)]
    EC = V.get(16, 4); GC = V.get(64, 4)
    def fill1():
        I(f"v_and_b32 v{t0}, 1, v{vN}\nv_lshl_add_u32 v{t0}, v{t2}, 1, v{t0}\nv_cvt_f32_u32 v{t0}, v{t0}\nv_mul_f32 v{t0}, {fhex(0.125)}, v{t0}")
        I(f"v_lshrrev_b32 v{t1}, 1, v{vN}\nv_and_b32 v{t3}, 1, v{t1}\nv_mul_u32_u24 v{t3}, 0x8000, v{t3}\nv_lshl_or_b32 v{t3}, v{t3}, 16, v{t3}\nv_cvt_f32_u32 v{t1}, v{t1}\nv_mul_f32 v{t1}, {fhex(0.125)}, v{t1}")
        I(f"v_mul_f32 v{T}, v{fq}, v{t0}\nv_add_f32 v{T}, v{T}, v{T}\nv_add_f32 v{T+1}, v{T}, v{t0}")
        for c in range(4):
            if c: I(f"v_add_f32 v{T}, v{T}, v{t1}\nv_add_f32 v{T+1}, v{T+1}, v{t1}")
            I(f"v_cos_f32 v{T+2}, v{T}\nv_sin_f32 v{T+3}, v{T}\nv_cos_f32 v{T+4}, v{T+1}\nv_sin_f32 v{T+5}, v{T+1}")
            I(f"v_cvt_pk_bf16_f32 v{EC+2*c}, v{T+2}, -v{T+3}\nv_cvt_pk_bf16_f32 v{EC+2*c+1}, v{T+4}, -v{T+5}")
        for i in range(8): I(f"v_xor_b32 v{EC+8+i}, v{t3}, v{EC+i}")
    poll("x1", [f"buffer_load_dwordx4 {vr(IN,4)}, v{vX1L}, {sr(S_WS,4)}, s{sA} offen sc1", f"buffer_load_dwordx4 {vr(IN+4,4)}, v{vX1L}, {sr(S_WS,4)}, s63 offen sc1"], fill1, wq_loads)
    stamp("x1ok")
    V.put(vX1L); V.put(PF, 2)
    for h2 in range(2):
        for e in range(2):
            I(f"ds_write2st64_b32 v{vBW}, v{IN+4*h2+2*e}, v{IN+4*h2+2*e+1} offset0:{2*h2+8*e} offset1:{2*h2+8*e+4}")
    a.wait_lg0(); I("s_barrier")
    I(f"ds_read_b128 {vr(IN,4)}, v{vBR}\nds_read_b128 {vr(IN+4,4)}, v{vBR} offset:1024")
    check("wq", wq_loads, WL)
    DB = V.get(16, 4)
    def bstage(st, op, data_is_a):
        for col in range(2):
            for ri in range(2):
                x, m = vr(IN+4*col, 4), vr(MB+8*st+4*ri, 4)
                I(f"{op} {vr(DB+8*col+4*ri,4)}, {x if data_is_a else m}, {m if data_is_a else x}, 0")
    def cmul(tw, cvt):
        for col in range(2):
            c, s = tw(col); R, J = DB + 8*col, DB + 8*col + 4; o = T + 8*col
            for e in (0, 2): I(f"v_pk_mul_f32 {vr(o+e,2)}, {vr(R+e,2)}, {vr(c+e,2)}\nv_pk_mul_f32 {vr(o+4+e,2)}, {vr(R+e,2)}, {vr(s+e,2)}")
            for e in (0, 2): I(f"v_pk_fma_f32 {vr(o+e,2)}, {vr(J+e,2)}, {vr(s+e,2)}, {vr(o+e,2)} neg_lo:[1,0,0] neg_hi:[1,0,0]\nv_pk_fma_f32 {vr(o+4+e,2)}, {vr(J+e,2)}, {vr(c+e,2)}, {vr(o+4+e,2)}")
        for col in range(2):
            o = T + 8*col
            for i in range(4): I(f"{cvt} v{IN+4*col+i}, v{o+i}, v{o+4+i}")
    bstage(0, "v_mfma_f32_16x16x32_f16", True)
    for h in range(2):
        for x in range(4):
            d = WF + 4*(x >> 1) + 2*h + (x & 1)
            I(f"v_lshlrev_b32 v{d}, 16, v{WL+4*h+x}\nv_and_b32 v{d+8}, 0xffff0000, v{WL+4*h+x}")
    w1_point('bbar')
    cmul(lambda c: (TW1, TW1+4), "v_cvt_pk_f16_f32")
    bstage(1, "v_mfma_f32_16x16x32_f16", False); cmul(lambda c: (WF+8*c, WF+8*c+4), "v_cvt_pk_bf16_f32")
    bstage(2, "v_mfma_f32_16x16x32_bf16", True); cmul(lambda c: (TW2, TW2+4), "v_cvt_pk_bf16_f32")
    bstage(3, "v_mfma_f32_16x16x32_bf16", True)
    for ri in range(2):
        for i in range(4): I(f"v_cvt_pk_bf16_f32 v{T+4*ri+i}, v{DB+4*ri+i}, v{DB+8+4*ri+i}")
        for i in range(4): I(f"v_min_u32 v{T+4*ri+i}, -2, v{T+4*ri+i}")
        I(f"ds_write_b128 v{vOW}, {vr(T+4*ri,4)} offset:{4160*ri}")
    a.wait_lg0(); I("s_barrier")
    for h2 in range(2):
        for e in range(2):
            I(f"ds_read2st64_b32 {vr(DB+4*h2+2*e,2)}, v{vOR} offset0:{2*h2+8*e} offset1:{2*h2+8*e+4}")
    for h2 in range(2):
        tok_ack2 = I(f"buffer_store_dwordx4 {vr(DB+4*h2,4)}, v{vX2S}, {sr(S_WS,4)}, s{sA+1} offen offset:{256*h2} sc1")
    stamp("Bdone")
    I(f"v_and_b32 v{vFL}, 0x1f0, v{vL16}\ns_lshl_b32 s{sT}, s{sG}, 9\ns_add_u32 s{sT}, s{sT}, {FL0}")
    I(f"buffer_load_dword v{FV}, v{vFL}, {sr(S_WS,4)}, s{sT} offen offset:8 sc1")
    I(f"s_lshl_b32 s{sT}, s{sG}, 12\ns_lshl_b32 s58, s{sW}, 10\ns_add_u32 s{sT}, s{sT}, s58\ns_add_u32 s{sA+5}, s{sT}, {FL3}\nbuffer_load_dword v{FV+1}, v{vL16}, {sr(S_WS,4)}, s{sA+5} offen sc1")
    V.put(WL, 8); V.put(vWS)
    w1_point('bdone')
    V.put(MB, 32); V.put(TW1, 8); V.put(TW2, 8); V.put(WF, 16); V.put(vBW); V.put(vBR); V.put(vOW); V.put(vOR); V.put(vX2S)
    I(f"s_or_b32 s{sT}, s2, s{sW}\ns_cmp_lg_u32 s{sT}, 0\ns_cbranch_scc1 L_nogen")
    I(f"s_mov_b32 s{sT}, {GEN}\ns_mov_b64 exec, 1")
    I(f"buffer_store_dwordx2 {vr(FLG,2)}, off, {sr(S_WS,4)}, s{sT} sc1", track=False)
    I("s_mov_b64 exec, -1")
    a.label("L_nogen")
    KF, A0 = V.get(4, 1), V.get(8, 1); FIX = V.get()
    I(f"v_lshl_add_u32 v{t0}, v{vR}, 3, v{vC}\nv_cvt_f32_u32 v{t0}, v{t0}")
    I(f"v_lshlrev_b32 v{t1}, 6, v{vQ}\nv_lshl_add_u32 v{t1}, v{t2}, 1, v{t1}\nv_cmp_eq_u32 vcc, 0, v{t1}\nv_cvt_f32_u32 v{t1}, v{t1}")
    I(f"v_mov_b32 v{FIX}, 0.5\nv_and_b32 v{t3}, 0x80000000, v{vSGN_ODD}\nv_xor_b32 v{FIX}, v{t3}, v{FIX}\nv_cndmask_b32 v{FIX}, 1.0, v{FIX}, vcc")
    for t in range(4):
        I(f"v_add_f32 v{t3}, {fhex(32.0*(t>>1)+4.0*(t&1))}, v{t0}\nv_mul_f32 v{t3}, {fhex(1/512)}, v{t3}\nv_mul_f32 v{KF+t}, {fhex(8.0)}, v{t3}")
        I(f"v_mul_f32 v{A0+2*t}, v{t3}, v{t1}\nv_add_f32 v{A0+2*t+1}, v{A0+2*t}, v{t3}")
    def ctab(half):
        chs = [(t, cb) for t in (2*half, 2*half+1) for cb in range(2)]
        recur(4, [KF+t for t, cb in chs], [A0+2*t+cb for t, cb in chs], 8, 2.0**-11,
              lambda ch, jp: (GC + 16*chs[ch][0] + 8*chs[ch][1] + jp, GC + 16*chs[ch][0] + 8*chs[ch][1] + 4 + jp), "v_cvt_pk_bf16_f32",
              fix=lambda ch: FIX if chs[ch][1] == 0 else None)
    ctab(0)
    vX2L, vCW, vCR, vHS = V.get(), V.get(), V.get(), V.get()
    I(f"v_lshrrev_b32 v{t0}, 1, v{vN}\nv_lshlrev_b32 v{t0}, 4, v{t0}\nv_lshl_add_u32 v{t0}, v{t2}, 2, v{t0}\nv_add_u32 v{t0}, v{t0}, v{vQ}\nv_and_b32 v{t1}, 1, v{vN}\nv_lshlrev_b32 v{t1}, 4, v{t1}\nv_lshl_add_u32 v{vX2L}, v{t0}, 11, v{t1}")
    I(f"s_lshl_b32 s{sT}, s{sG}, 20\ns_lshl_b32 s58, s{sM}, 5\ns_add_u32 s{sT}, s{sT}, s58\ns_add_u32 s{sA}, s{sT}, {GR}")
    a.wait_tok(tok_ack2)
    stamp("ack2")
    def fill2():
        I(f"v_cmp_ne_u32 vcc, s{sXCC}, v{FV}\ns_cmp_eq_u64 vcc, 0\ns_cselect_b32 s{sMODE}, {0 if cfg.get('force_slow') else 1}, 0")
        ctab(1)
        I(f"v_lshlrev_b32 v{t0}, 4, v{vL}\nv_add_u32 v{vCR}, {SCR_C}, v{t0}\nv_lshl_add_u32 v{vCW}, v{t2}, 12, v{vCR}")
        I(f"v_lshrrev_b32 v{t0}, 1, v{vN}\nv_lshlrev_b32 v{t0}, 11, v{t0}\nv_lshl_add_u32 v{t0}, v{vQ}, 8, v{t0}\nv_lshl_add_u32 v{t0}, v{t2}, 5, v{t0}\nv_and_b32 v{t1}, 1, v{vN}\nv_lshl_add_u32 v{vHS}, v{t1}, 4, v{t0}")
        I(f"v_xor_b32 v{vSGN_ODD}, 0x80008000, v{vSGN_ODD}")
        I(f"s_mov_b32 s60, 0x05040100\ns_mov_b32 s61, 0x07060302")
    poll("x2", [f"buffer_load_dwordx4 {vr(IN,4)}, v{vX2L}, {sr(S_WS,4)}, s{sA} offen sc1", f"buffer_load_dwordx4 {vr(IN+4,4)}, v{vX2L}, {sr(S_WS,4)}, s{sA} offen offset:1024 sc1"], fill2)
    stamp("x2ok")
    V.put(KF, 4); V.put(A0, 8); V.put(FIX); V.put(vX2L); V.put(fq); V.put(fn)
    FA = DB
    for cb in range(2):
        for e in range(4): I(f"v_perm_b32 v{FA+4*cb+e}, v{IN+2*e+1}, v{IN+2*e}, s{60+cb}")
    D1 = V.get(32, 4)
    k = 0
    for t in range(4):
        for cb in range(2):
            I(f"v_mfma_f32_16x16x32_bf16 {vr(D1+8*t+4*cb,4)}, {vr(FA+4*cb,4)}, {vr(GC+16*t+8*cb,4)}, 0")
            I(f"v_xor_b32_dpp v{FA+8+k}, v{FA+k}, v{vSGN_ODD} quad_perm:[1,0,3,2] row_mask:0xf bank_mask:0xf"); k += 1
    pend = []
    for t in range(4):
        for cb in range(2):
            I(f"v_mfma_f32_16x16x32_bf16 {vr(D1+8*t+4*cb,4)}, {vr(FA+8+4*cb,4)}, {vr(GC+16*t+8*cb+4,4)}, {vr(D1+8*t+4*cb,4)}")
    for t in range(4):
        for e in range(4): I(f"v_cvt_pk_bf16_f32 v{T+4*t+e}, v{D1+8*t+2*e}, v{D1+8*t+2*e+1}")
        I(f"ds_write_b128 v{vCW}, {vr(T+4*t,4)} offset:{1024*t}")
    a.wait_lg0(); I("s_barrier")
    ZF = GC
    for ks in range(4):
        for t in range(4): I(f"ds_read_b128 {vr(ZF+16*ks+4*t,4)}, v{vCR} offset:{4096*ks+1024*t}")
    w1_point('cbar')
    for ks in range(4):
        for t in range(4):
            I(f"v_mfma_f32_16x16x32_bf16 {vr(HX+4*t,4)}, {vr(ZF+16*ks+4*t,4)}, {vr(EC+4*ks,4)}, {vr(HX+4*t,4)}")
    I(f"s_lshl_b32 s{sT}, s{sG}, 18\ns_lshr_b32 s58, s{sM}, 1\ns_lshl_b32 s58, s58, 14\ns_add_u32 s{sT}, s{sT}, s58\ns_and_b32 s58, s{sM}, 1\ns_lshl_b32 s58, s58, 7\ns_add_u32 s{sT}, s{sT}, s58")
    I(f"s_add_u32 s{sA}, s{sT}, {HN}")
    R_, B_ = stats(HX, True, BETA)
    for i in range(8):
        I(f"v_pk_fma_f32 {vr(D1+2*i,2)}, {vr(HX+2*i,2)}, {vr(R_,2)}, {vr(B_,2)} op_sel_hi:[1,0,0] neg_lo:[0,0,1] neg_hi:[0,0,1]")
    for i in range(8): I(f"v_cvt_pk_bf16_f32 v{D1+16+i}, v{D1+2*i}, v{D1+2*i+1}")
    modal([f"buffer_store_dwordx4 {vr(D1+16+4*h,4)}, v{vHS}, {sr(S_WS,4)}, s{sA} offen offset:{1024*h}" for h in range(2)])
    I(f"v_mov_b32 v{FLG+2}, v{T}\nv_rcp_f32 v{FLG+3}, v{R_}")
    stamp("Cdone")
    w1_point('cdone')
    V.put(EC, 16); V.put(GC, 64); V.put(HX, 16); V.put(DB, 16); V.put(IN, 8); V.put(vCW); V.put(vCR); V.put(vHS); V.put(vSGN_ODD); V.put(T, 16)
    srd(S_WD, 16, 1792*1024); srd(S_OUT, 18, 2048*1024)
    I(f"v_lshlrev_b32 v{t0}, 2, v{vQ}\nv_add_u32 v{t0}, v{t0}, v{vR}\nv_bfe_u32 v{t1}, v{t0}, 1, 2\nv_lshlrev_b32 v{t0}, 7, v{t0}\nv_lshl_add_u32 v{t0}, v{t1}, 5, v{t0}\nv_lshl_add_u32 v{vG1}, v{vC}, 3, v{t0}")
    for ct in range(1, 4): I(f"v_xor_b32 v{vG1+ct}, {32*ct}, v{vG1}")
    I(f"s_lshl_b32 s63, s{sW}, 13\ns_add_u32 s63, s63, {STG}")
    for ct in range(4): I(f"v_add_u32 v{vG1+4+ct}, {IMG_U}, v{vG1+ct}\nv_add_u32 v{vS2+ct}, s63, v{vG1+ct}")
    V.put(vR); V.put(vC)
    I(f"s_mul_i32 s62, s{sW}, {448*1024}\ns_and_b32 s58, s{sM}, 7\ns_lshl_b32 s58, s58, 7\ns_add_u32 s62, s62, s58")
    I(f"s_lshl_b32 s{sT}, s{sPOS}, 7\ns_lshl_b32 s58, s{sW}, 5\ns_add_u32 s{sT}, s{sT}, s58\ns_add_u32 s{sT}, s{sT}, {FL3}")
    I(f"v_mov_b32 v{vFL}, v{vL16}")
    I(f"s_lshl_b32 s58, s{sG}, 18\ns_lshl_b32 s59, s{sW}, 16\ns_add_u32 s{sA}, s58, s59")
    for rt in range(1, 4): I(f"s_add_u32 s{sA+rt}, s{sA}, {16384*rt}")
    a.wait_vm0()
    stamp("ack3")
    I("s_mov_b64 exec, 3")
    modal([f"buffer_store_dwordx4 {vr(FLG,4)}, v{vL16}, {sr(S_WS,4)}, s{sT} offen"])
    I("s_mov_b64 exec, -1")
    V.put(D1, 32)
    def flagload(soff, track=True): return I(f"buffer_load_dwordx2 {vr(FV,2)}, v{vFL}, {sr(S_WS,4)}, {soff} offen sc1", track=track)
    def flagcheck(name, soff):
        a.need(vr(FV, 2))
        a.label(f"L_{name}")
        I(f"v_cmp_ne_u64 vcc, s[{sTAG}:{sTAG+1}], {vr(FV,2)}\ns_cbranch_vccz L_{name}ok")
        spin_check()
        flagload(soff, False)
        I(f"s_waitcnt vmcnt(0)\ns_branch L_{name}")
        a.label(f"L_{name}ok")
    flagload(f"s{sA+5}")
    sHS, sHL, sF4S, sF4L, sRES, sOUT, sRST = 28, 29, 30, 31, 32, 33, 34
    I(f"s_lshl_b32 s58, s{sG}, 20\ns_add_u32 s58, s58, {GR}\ns_mul_i32 s59, s{sW}, 28\ns_add_u32 s59, s59, s{sM}\ns_lshl_b32 s59, s59, 12\ns_add_u32 s{sHS}, s58, s59")
    I(f"s_lshr_b32 s59, s{sM}, 3\ns_mul_i32 s59, s59, 28\ns_mul_i32 s60, s{sW}, 7\ns_add_u32 s59, s59, s60\ns_lshl_b32 s59, s59, 12\ns_add_u32 s{sHL}, s58, s59")
    I(f"s_lshl_b32 s58, s{sG}, 2\ns_add_u32 s58, s58, s{sW}\ns_lshl_b32 s58, s58, 5\ns_add_u32 s58, s58, s{sM}\ns_lshl_b32 s58, s58, 3\ns_add_u32 s{sF4S}, s58, {FL4}")
    I(f"s_lshr_b32 s58, s{sPOS}, 3\ns_lshl_b32 s59, s58, 5\ns_add_u32 s59, s59, s60\ns_lshl_b32 s59, s59, 3\ns_add_u32 s{sF4L}, s59, {FL4}")
    I(f"s_lshl_b32 s58, s58, 2\ns_add_u32 s58, s58, s{sW}\ns_and_b32 s59, s{sM}, 7")
    I(f"s_lshl_b32 s{sRES}, s58, 14\ns_lshl_b32 s61, s59, 11\ns_add_u32 s{sRES}, s{sRES}, s61\ns_lshl_b32 s{sRST}, s58, 8\ns_add_u32 s{sRST}, s{sRST}, {FL3}")
    I(f"s_lshl_b32 s{sOUT}, s58, 11\ns_lshl_b32 s61, s59, 7\ns_add_u32 s{sOUT}, s{sOUT}, s61")
    I(f"v_lshrrev_b32 v{t0}, 3, v{vL}\nv_and_b32 v{t1}, 7, v{vL}\nv_lshlrev_b32 v{FV+3}, 4, v{t0}\nv_lshl_add_u32 v{vW1}, v{t1}, 8, v{FV+3}")
    I(f"v_lshrrev_b32 v{t0}, 5, v{vL}\nv_mul_u32_u24 v{t0}, {448*1024}, v{t0}\nv_and_b32 v{t1}, 31, v{vL}\nv_lshl_add_u32 v{FV+2}, v{t1}, 7, v{t0}")
    flagcheck("f3", f"s{sA+5}")
    stamp("f3ok")
    I(f"v_lshlrev_b32 v{vFL}, 3, v{vL}\nv_min_u32 v{vFL}, 48, v{vFL}")
    ACC = V.get(128, 4); DEPTH = cfg.get('depth', 5); ACT = V.get(16*DEPTH, 4); WR_ = V.get(16, 4)
    def act_load(ks, rt):
        t = f"buffer_load_dwordx4 {vr(ACT+16*(ks%DEPTH)+4*rt,4)}, v{vL16}, {sr(S_WS,4)}, s{sA+rt} offen offset:{1024*(ks%4)} sc1"
        if ks % 4 == 3: t += f"\ns_add_u32 s{sA+rt}, s{sA+rt}, 4096"
        return t
    def w_read(n, hh):
        ks, j = divmod(n, 8)
        return f"ds_read_b64_tr_b16 {vr(WR_+4*(n%4)+2*hh,2)}, v{vG1+j} offset:{ks*4096+hh*2048}"
    def w2_dma(k2, ii):
        fr = 64*(k2 % 7) + 32*(k2//7) + 8*ii
        return (f"s_add_u32 s61, s62, {fr*1024}\ns_add_u32 m0, s63, {(k2%2)*4096+ii*1024}", f"buffer_load_dwordx4 v{vD2}, {sr(S_WD,4)}, s61 offen lds")
    def w2_read(k2, ct, hh):
        return f"ds_read_b64_tr_b16 {ar(16*k2+4*ct+2*hh,2)}, v{vS2+ct} offset:{(k2%2)*4096+hh*2048}"
    res_loads = [f"buffer_load_dwordx4 {ar(224+4*p,4)}, v{vW1}, {sr(S_WS,4)}, s{sRES} offen offset:{128*p} sc1\nbuffer_load_dwordx2 {ar(238+2*p,2)}, v{FV+3}, {sr(S_WS,4)}, s{sRST} offen offset:{128*p+8} sc1" for p in range(2)]
    f4_touch = [f"buffer_load_dwordx2 {ar(234,2)}, v{vFL}, {sr(S_WS,4)}, s{sF4L} offen sc1", f"s_add_u32 s60, s{sF4L}, 0x2000\nbuffer_load_dwordx2 {ar(234,2)}, v{vFL}, {sr(S_WS,4)}, s60 offen sc1"]
    I(f"s_cmp_ge_u32 s{sM}, 28\ns_cbranch_scc1 L_touch")
    for ks in range(DEPTH-1):
        for rt in range(4): I(act_load(ks, rt))
    I("s_barrier")
    W2S = cfg.get('w2_start', 0); W2P = cfg.get('w2_period', 2)
    w2_issue = {k2: W2S + W2P*k2 for k2 in range(14)}
    w2_rd = {k2: w2_issue[k2] + 2*W2P - 1 for k2 in range(14)}
    w2tok = {}; w2rdtok = {}
    for n in range(3):
        for hh in range(2): I(w_read(n, hh))
    TOUCH_AT = cfg.get('touch_at', 12)
    for ks in range(16):
        fill = {i: [] for i in range(32)}
        for j in range(8):
            n = ks*8 + j + 3
            if n < 128:
                fill[4*j].append(('v', w_read(n, 0))); fill[4*j+1].append(('v', w_read(n, 1)))
        if ks + DEPTH - 1 < 16:
            for rt in range(4): fill[2+8*rt].append(('v', act_load(ks+DEPTH-1, rt)))
        if ks == TOUCH_AT:
            if cfg.get('htouch', True): fill[2].append(('v', f"buffer_load_dword a232, v{FV+2}, {sr(S_WS,4)}, s{sHS} offen sc1 {cfg.get('nth', NT)}"))
            if cfg.get('touch64'): fill[6].append(('v', f"buffer_load_dword a233, v{FV+2}, {sr(S_WS,4)}, s{sHS} offen offset:64 sc1 {cfg.get('nth', NT)}"))
            fill[10].append(('v', res_loads[0])); fill[18].append(('v', res_loads[1]))
            fill[26].append(('v', f4_touch[0])); fill[30].append(('u', f4_touch[1]))
        for hs in range(2):
            for k2 in range(14):
                if w2_rd[k2] == 2*ks + hs:
                    fill[16*hs].insert(0, ('wt', k2))
                    slots = [0, 1, 4, 5, 8, 9, 12, 13]
                    for x in range(8): fill[16*hs+slots[x]].append(('r2', (k2, w2_read(k2, x >> 1, x & 1))))
                if w2_issue[k2] == 2*ks + hs:
                    for ii in range(4): fill[16*hs+3+4*ii].append(('dma', (k2, ii)))
        if ks % 4 == 0 and ks: stamp(f"_g{ks}")
        for i in range(32):
            j, rt = divmod(i, 4); n = ks*8 + j
            d = vr(ACC+16*j+4*rt, 4)
            I(f"v_mfma_f32_16x16x32_bf16 {d}, {vr(WR_+4*(n%4),4)}, {vr(ACT+16*(ks%DEPTH)+4*rt,4)}, {d if ks else 0}")
            if i < 31:
                j2, rt2 = divmod(i+1, 4); a.need(vr(WR_+4*((ks*8+j2)%4),4) + " " + vr(ACT+16*(ks%DEPTH)+4*rt2,4))
            elif ks < 15: a.need(vr(WR_+4*((ks*8+8)%4),4) + " " + vr(ACT+16*((ks+1)%DEPTH),4))
            for kind, x in fill[i]:
                if kind == 'v': I(x)
                elif kind == 'u': I(x.replace('a[234:235]', 'a[236:237]'))
                elif kind == 'wt': a.wait_tok(w2tok[x])
                elif kind == 'r2': w2rdtok[x[0]] = I(x[1])
                elif kind == 'dma':
                    if x[1] == 0 and x[0] >= 2: a.wait_tok(w2rdtok[x[0]-2])
                    s, v = w2_dma(*x); I(s); w2tok[x[0]] = I(v)
    stamp("G1done")
    I("s_barrier")
    I(f"s_mov_b32 s58, {fhex(KAPPA)}\ns_mov_b32 s59, s58\ns_add_u32 s{sA}, s{sHS}, {448*1024}\ns_add_u32 s{sA+1}, s{sF4S}, 0x2000")
    GT = WR_
    HP = ACT
    def gelu(G, U, n, dst, tb):
        s = GT + tb
        for e in range(0, n, 2): I(f"v_pk_fma_f32 {vr(s+e,2)}, {vr(G+e,2)}, {vr(G+e,2)}, s[58:59]")
        for e in range(0, n, 2): I(f"v_pk_mul_f32 {vr(s+e,2)}, {vr(s+e,2)}, {vr(G+e,2)}")
        for e in range(n): I(f"v_exp_f32 v{s+e}, -v{s+e}")
        for e in range(0, n, 2): I(f"v_pk_mul_f32 {vr(G+e,2)}, {vr(G+e,2)}, {vr(U+e,2)}")
        for e in range(0, n, 2): I(f"v_pk_add_f32 {vr(s+e,2)}, {vr(s+e,2)}, 1.0 op_sel_hi:[1,0]")
        for e in range(n): I(f"v_rcp_f32 v{s+e}, v{s+e}")
        for e in range(0, n, 2): I(f"v_pk_mul_f32 {vr(G+e,2)}, {vr(G+e,2)}, {vr(s+e,2)}")
        for e in range(0, n, 2): I(f"v_cvt_pk_bf16_f32 v{dst+e//2}, v{G+e}, v{G+e+1}")
    step = [32]
    def w2_tail_step():
        ks = step[0]; step[0] += 1
        for k2 in range(14):
            if w2_rd[k2] == ks:
                a.wait_tok(w2tok[k2])
                for x in range(8): w2rdtok[k2] = I(w2_read(k2, x >> 1, x & 1))
        for k2 in range(14):
            if w2_issue[k2] == ks:
                if k2 >= 2: a.wait_tok(w2rdtok[k2-2])
                for ii in range(4):
                    s, v = w2_dma(k2, ii); I(s); w2tok[k2] = I(v)
    F1AT, P1AT = cfg.get('f1_at', 1), cfg.get('p1_at', 2)
    for st in range(2):
        for rt in range(4):
            h = HP + 4*(rt % 2)
            gelu(ACC+32*st+4*rt, ACC+64+32*st+4*rt, 4, h, 0); gelu(ACC+32*st+16+4*rt, ACC+80+32*st+4*rt, 4, h+2, 4)
            tk = modal([f"buffer_store_dwordx4 {vr(h,4)}, v{vL16}, {sr(S_WS,4)}, s{sA if st else sHS} offen offset:{1024*rt}"])
            if st == 0: tk1 = tk
            w2_tail_step()
            if st == 1 and rt == F1AT:
                a.wait_tok(tk1)
                I("s_mov_b64 exec, 1")
                modal([f"buffer_store_dwordx2 {vr(FLG,2)}, off, {sr(S_WS,4)}, s{sF4S}"])
                I("s_mov_b64 exec, -1")
            if st == 1 and rt == P1AT: flagload(f"s{sF4L}")
    while step[0] <= max(w2_rd.values()): w2_tail_step()
    tk2 = tk
    stamp("gelu")
    a.label("L_join")
    flagcheck("f4a", f"s{sF4L}")
    stamp("f4a")
    V.put(ACC, 128); V.put(ACT, 16*DEPTH); V.put(WR_, 16)
    HF = V.get(16*9, 4)
    AC2 = V.get(64, 4)
    def h_load(k2, x):
        t = f"buffer_load_dwordx4 {vr(HF+16*(k2%9)+4*x,4)}, v{vL16}, {sr(S_WS,4)}, s60 offen offset:{1024*x} sc1"
        if x == 0: t = f"s_add_u32 s60, s{sHL}, {(k2//7)*448*1024 + (k2%7)*4096}\n" + t
        return t
    NPRE = cfg.get('npre', 3)
    for k2 in range(NPRE):
        for x in range(4): I(h_load(k2, x))
    a.wait_tok(tk2)
    I(f"s_cmp_ge_u32 s{sM}, 28\ns_cbranch_scc1 L_nof2\ns_mov_b64 exec, 1")
    modal([f"buffer_store_dwordx2 {vr(FLG,2)}, off, {sr(S_WS,4)}, s{sA+1}"]); a.vm.pop()
    I("s_mov_b64 exec, -1")
    a.label("L_nof2")
    I(f"s_add_u32 s{sF4L}, s{sF4L}, 0x2000")
    def mm(k2, rt, ct):
        d = vr(AC2+16*rt+4*ct, 4)
        I(f"v_mfma_f32_16x16x32_bf16 {d}, {ar(16*k2+4*ct,4)}, {vr(HF+16*(k2%9)+4*rt,4)}, {d if k2 else 0}")
    vO, vPW, vPR = V.get(), V.get(4, 1), V.get(2, 1)
    misc = [f"v_lshrrev_b32 v{t0}, 3, v{vL}", f"v_and_b32 v{t1}, 7, v{vL}", f"v_lshlrev_b32 v{t3}, 4, v{t1}", f"v_lshl_add_u32 v{vO}, v{t0}, 18, v{t3}",
            f"v_lshlrev_b32 v{t1}, 1, v{t1}", f"v_xor_b32 v{t1}, v{t1}, v{t0}", f"v_lshl_add_u32 v{t0}, v{t2}, 4, v{t0}", f"v_lshlrev_b32 v{t0}, 8, v{t0}", f"v_lshl_add_u32 v{vPR}, v{t1}, 4, v{t0}", f"v_xor_b32 v{vPR+1}, 16, v{vPR}",
            f"v_and_b32 v{t0}, 7, v{vN}", f"v_xor_b32 v{t0}, v{t0}, v{vQ}", f"v_lshlrev_b32 v{t0}, 4, v{t0}", f"v_lshl_add_u32 v{t0}, v{vN}, 8, v{t0}", f"v_lshl_add_u32 v{vPW}, v{t2}, 14, v{t0}",
            f"v_xor_b32 v{vPW+1}, 64, v{vPW}", f"v_xor_b32 v{vPW+2}, 0x80, v{vPW}", f"v_xor_b32 v{vPW+3}, 0xc0, v{vPW}"]
    for t in misc: I(t)
    F2L, F2C = cfg.get('f2_load', 5), cfg.get('f2_check', 7)
    NSEQ = cfg.get('nseq', 3)
    nxt = [NPRE*4]
    def next_load(cur):
        k2, x = divmod(nxt[0], 4)
        if k2 >= 14 or k2 - 9 >= cur: return
        if x == 0 and k2 == F2L: flagload(f"s{sF4L}")
        if x == 0 and k2 == 7: flagcheck("f4b", f"s{sF4L}")
        I(h_load(k2, x)); nxt[0] += 1
    RATE = cfg.get('g2_rate', 3)
    cnt = 0
    for k2 in range(14 - NSEQ):
        for rt in range(4):
            for ct in range(4):
                mm(k2, rt, ct); cnt += 1
                if ct == 3:
                    k3, r3 = (k2, rt+1) if rt < 3 else (k2+1, 0)
                    while nxt[0] <= 4*k3 + r3: next_load(k2)
                    a.need(vr(HF+16*(k3%9)+4*r3, 4))
                elif cnt % RATE == 0: next_load(k2)
    while nxt[0] < 56: next_load(14)
    wr = []
    for rt in range(4):
        n = 0
        for k2 in range(14 - NSEQ, 14):
            for ct in range(4):
                mm(k2, rt, ct); n += 1
                if wr and n >= 4 and n % 2 == 0: I(wr.pop(0))
        for t in wr: I(t)
        wr = [f"ds_write_b128 v{vPW+ct}, {vr(AC2+16*rt+4*ct,4)} offset:{4096*rt}" for ct in range(4)]
    RES = V.get(8, 4); RF = HF + 64
    for i in range(8): I(f"v_accvgpr_read_b32 v{RES+i}, a{224+i}")
    for i in range(4): I(f"v_accvgpr_read_b32 v{FLG+i}, a{238+i}")
    for t in wr: I(t)
    stamp("G2done")
    a.wait_lg0(); I("s_barrier")
    PR = HF
    for p in range(2):
        for e in range(2):
            for j in range(4): I(f"ds_read_b128 {vr(PR+32*p+16*e+4*j,4)}, v{vPR+e} offset:{16384*j+2048*p}")
    unpack(RF, RES, 8)
    for i in range(8):
        f = FLG + 2*(i//4)
        I(f"v_pk_fma_f32 {vr(RF+2*i,2)}, {vr(RF+2*i,2)}, {vr(f,2)}, {vr(f,2)} op_sel:[0,1,0] op_sel_hi:[1,1,0]")
    I(f"s_mov_b32 s58, {fhex(1/(BETA*BETA))}\ns_mov_b32 s59, s58")
    for p in range(2):
        for e in range(2):
            b = PR + 32*p + 16*e
            for o in (0, 2): I(f"v_pk_add_f32 {vr(b+o,2)}, {vr(b+o,2)}, {vr(b+4+o,2)}\nv_pk_add_f32 {vr(b+8+o,2)}, {vr(b+8+o,2)}, {vr(b+12+o,2)}")
            for o in (0, 2): I(f"v_pk_add_f32 {vr(b+o,2)}, {vr(b+o,2)}, {vr(b+8+o,2)}")
            for o in (0, 2): I(f"v_pk_fma_f32 {vr(b+o,2)}, {vr(b+o,2)}, s[58:59], {vr(RF+8*p+4*e+o,2)}")
            for o in (0, 2): I(f"v_cvt_pk_bf16_f32 v{RES+4*p+2*e+o//2}, v{b+o}, v{b+o+1}")
        I(f"buffer_store_dwordx4 {vr(RES+4*p,4)}, v{vO}, {sr(S_OUT,4)}, s{sOUT} offen offset:{1024*p} {cfg.get('outflag','')}")
    def toucher():
        b = Asm(); J = b.I
        b.label("L_touch")
        J("s_barrier")
        J(f"s_sub_u32 s58, s{sM}, 28\ns_mul_i32 s58, s58, {448*1024}\ns_lshl_b32 s59, s{sW}, 13\ns_add_u32 s58, s58, s59\nv_lshlrev_b32 v{t0}, 7, v{vL}")
        for k2 in range(4, 14):
            J(f"s_add_u32 s60, s58, {(64*(k2%7) + 32*(k2//7))*1024}\nbuffer_load_dword v{32+2*k2}, v{t0}, {sr(S_WD,4)}, s60 offen")
            if cfg.get('touch64'): J(f"buffer_load_dword v{33+2*k2}, v{t0}, {sr(S_WD,4)}, s60 offen offset:64")
        for t in res_loads: J(t)
        tk = {}; rk = {}
        for k2 in range(15):
            if k2 < 14:
                if k2 >= 2: b.wait_tok(rk[k2-2])
                for ii in range(4):
                    s, v = w2_dma(k2, ii); J(s); tk[k2] = J(v)
            if k2 >= 1:
                b.wait_tok(tk[k2-1])
                for x in range(8): rk[k2-1] = J(w2_read(k2-1, x >> 1, x & 1))
        J(f"buffer_load_dwordx2 {vr(FV,2)}, v{vFL}, {sr(S_WS,4)}, s{sF4L} offen sc1")
        if dbg:
            for i, nm in enumerate(cfg['stamp_names']):
                if nm in ('G1done', 'gelu') or nm.startswith('_g'): J(f"s_memrealtime s[{STS[i]}:{STS[i]+1}]")
        J("s_waitcnt vmcnt(0) lgkmcnt(0)\ns_branch L_join")
        return b.text()
    if cfg.get('padto'):
        a.wait_vm0(); stamp("pend")
        I(f"s_mov_b32 s93, {cfg['padto']}")
        if cfg.get('probe'): I(f"s_sub_u32 s92, s96, s94\ns_min_u32 s92, s92, 5000\ns_mul_i32 s92, s92, 10\ns_cmp_lt_u32 s{sM}, 28\ns_cselect_b32 s92, s92, 0\ns_add_u32 s93, s93, s92")
        a.label("L_padto")
        I(f"s_memrealtime s[98:99]\ns_sub_u32 s98, s98, s100\ns_cmp_lt_u32 s98, s93\ns_cbranch_scc1 L_padto")
    if dbg:
        a.wait_vm0(); stamp("end"); a.wait_lg0()
        I(f"s_lshl_b32 s58, s2, 2\ns_add_u32 s58, s58, s{sW}\ns_lshl_b32 s58, s58, 7\ns_add_u32 s58, s58, {STAMP}\ns_mov_b64 exec, 1")
        for i in range(nst[0]):
            I(f"v_mov_b32 v4, s{STS[i]}\nbuffer_store_dword v4, off, {sr(S_WS,4)}, s58 offset:{4*i}")
        I(f"v_mov_b32 v4, s{sSPIN}\nbuffer_store_dword v4, off, {sr(S_WS,4)}, s58 offset:120\nv_mov_b32 v4, s{sMODE}\nbuffer_store_dword v4, off, {sr(S_WS,4)}, s58 offset:124")
    a.label("L_end")
    I("s_endpgm")
    a.raw(toucher())
    for n, lines in cfg.get('_tail', []):
        a.label(f"L_slow{n}")
        for t in lines: a.raw("  " + t + " sc1")
        a.raw("  s_nop 1")
        a.raw(f"  s_branch L_back{n}")
    a.raw(".p2align 8\nL_pad:\n.fill 8192, 4, 0xbf810000" if cfg.get('pad', True) else "")
    a.raw(f'''.section .rodata,"a"
.p2align 6
.amdhsa_kernel {NAME}_kernel
  .amdhsa_next_free_vgpr 512
  .amdhsa_next_free_sgpr 102
  .amdhsa_accum_offset 256
  .amdhsa_group_segment_fixed_size 0
  .amdhsa_kernarg_size 80
  .amdhsa_user_sgpr_count 2
  .amdhsa_user_sgpr_kernarg_segment_ptr 1
  .amdhsa_system_sgpr_workgroup_id_x 1
.end_amdhsa_kernel''')
    return a

if __name__ == "__main__":
    import json
    out = sys.argv[1]
    cfg = json.loads(sys.argv[2]) if len(sys.argv) > 2 else {}
    a = gen(cfg)
    hdr = ""
    open(out, "w").write(hdr + a.text())
    json.dump(cfg.get('stamp_names', []), open(out + ".stamps", "w"))
    print("instrs", sum(a.count.values()), "nops", a.count.get('s_nop', 0), "waits", a.count.get('s_waitcnt', 0))
```
